```python
import torch

def _softmax(x, axis=-1):
    return torch.softmax(x, dim=axis)

def _gelu(x):
    return torch.nn.functional.gelu(x, approximate='tanh')

def _silu(x):
    return torch.nn.functional.silu(x)

def _sigmoid(x):
    return torch.sigmoid(x)

def _layernorm(x, axis=-1, eps=1e-05):
    m = x.mean(dim=axis, keepdim=True)
    v = x.var(dim=axis, keepdim=True, unbiased=False)
    return (x - m) / torch.sqrt(v + eps)

def _scatter_add(tgt, idx, src, axis=0):
    return tgt.clone().index_add_(axis, idx, src)

def _segment_sum(src, seg, n):
    out = torch.zeros((n,) + src.shape[1:], dtype=src.dtype)
    return out.index_add_(0, seg, src)

def _pad(x, pw):
    flat = tuple((v for pair in reversed(pw) for v in pair))
    return torch.nn.functional.pad(x, flat)
kernel_name = 'adaLN_cond__spectral_gfnet__glu_gated_bilinear__prompt'

def setup_inputs():

    _w = lambda a: (lambda t: t.to(torch.bfloat16) if t.is_floating_point() else t)(torch.as_tensor(a))

    def _A_setup():
        B, S, D = (1, 2048, 512)
        Df = D // 2 + 1
        return {'x': _w((lambda *s: torch.randn(*s, dtype=torch.bfloat16) * 0.05)(B, S, D)), 'w_r': _w((lambda *s: torch.randn(*s, dtype=torch.bfloat16) * 3.2)(S, Df) * 0.02), 'w_i': _w((lambda *s: torch.randn(*s, dtype=torch.bfloat16) * 3.2)(S, Df) * 0.02)}
    _A_in = _A_setup()

    def _B_setup():
        B, S, D, F = (1, 2048, 512, 1376)
        return {'x': _w((lambda *s: torch.randn(*s, dtype=torch.bfloat16) * 0.05)(B, S, D)), 'w_gate': _w((lambda *s: torch.randn(*s, dtype=torch.bfloat16) * 0.4)(D, F) * D ** (-0.5)), 'w_up': _w((lambda *s: torch.randn(*s, dtype=torch.bfloat16) * 0.4)(D, F) * D ** (-0.5)), 'w_down': _w((lambda *s: torch.randn(*s, dtype=torch.bfloat16) * 0.4)(F, D) * F ** (-0.5))}
    _B_in = _B_setup()
    return {'A_x': _A_in['x'], 'A_w_r': _A_in['w_r'], 'A_w_i': _A_in['w_i'], 'B_x': _B_in['x'], 'B_w_gate': _B_in['w_gate'], 'B_w_up': _B_in['w_up'], 'B_w_down': _B_in['w_down'], 'c': _w((lambda *s: torch.randn(*s, dtype=torch.bfloat16) * 0.1)(1, 512) * 8.0), 'w_mod': _w((lambda *s: torch.randn(*s, dtype=torch.bfloat16) * 0.1)(512, 6 * 512) * 512 ** (-0.5) * 8.0)}

def reference(A_x, A_w_r, A_w_i, B_x, B_w_gate, B_w_up, B_w_down, c, w_mod):

    def _A_ref(x, w_r, w_i):
        B, S, D = x.shape
        X = (lambda x, axes=(-2, -1): torch.fft.rfft2(x.float(), dim=axes))(x, axes=(-2, -1))
        W = w_r + 1j * w_i
        X = X * W
        y = (lambda x, s, axes=(-2, -1): torch.fft.irfft2(x, s=s, dim=axes).to(torch.bfloat16))(X, (S, D), axes=(-2, -1))
        return y

    def _B_ref(x, w_gate, w_up, w_down):
        g = torch.einsum('bsd,df->bsf', x, w_gate)
        u = torch.einsum('bsd,df->bsf', x, w_up)
        h = g * u
        return torch.einsum('bsf,fd->bsd', h, w_down)
    x = A_x
    mod = (_silu(c) @ w_mod).reshape(c.shape[0], 6, 1, -1)
    sa, ca, ga, sb, cb, gb = (mod[:, 0].clone(), mod[:, 1].clone(), mod[:, 2].clone(), mod[:, 3].clone(), mod[:, 4].clone(), mod[:, 5].clone())
    h = _layernorm(x, axis=-1) * (1 + ca) + sa
    x = x + ga * _A_ref(h, A_w_r, A_w_i)
    h = _layernorm(x, axis=-1) * (1 + cb) + sb
    x = x + gb * _B_ref(h, B_w_gate, B_w_up, B_w_down)
    return x
```

```python
import re, struct

def f32bits(x):
    return struct.unpack('<I', struct.pack('<f', x))[0]
def fl(x):
    return "0x%08x" % f32bits(x)

REG_RE = re.compile(r'\b([vas])(\d+)\b|\b([vas])\[(\d+):(\d+)\]|\b(vcc|exec|m0|scc)\b')

def regs_of(op):
    out = []
    for m in REG_RE.finditer(op):
        if m.group(1):
            out.append((m.group(1), int(m.group(2))))
        elif m.group(3):
            out += [(m.group(3), i) for i in range(int(m.group(4)), int(m.group(5)) + 1)]
        else:
            out.append((m.group(6), 0))
    return out

def split_ops(s):
    ops, depth, cur = [], 0, ''
    for ch in s:
        if ch == '[': depth += 1
        if ch == ']': depth -= 1
        if ch == ',' and depth == 0:
            ops.append(cur.strip()); cur = ''
        else:
            cur += ch
    if cur.strip(): ops.append(cur.strip())
    return ops

TRANS = ('v_exp_f32', 'v_log_f32', 'v_rcp_f32', 'v_rsq_f32', 'v_sqrt_f32', 'v_sin_f32', 'v_cos_f32', 'v_rcp_iflag_f32')

class Ins:
    def __init__(self, text):
        self.text = text
        t = text.split(';')[0].strip()
        self.label = t.endswith(':') or t.startswith('.') or t == ''
        self.kind = None
        self.w, self.r = [], []
        self.states = 1
        if self.label:
            self.states = 0
            return
        parts = t.split(None, 1)
        op = parts[0]; rest = parts[1] if len(parts) > 1 else ''
        self.op = op
        ops = split_ops(rest)
        if ops:
            last = ops[-1].split()
            self.mods = ' '.join(last[1:])
            ops[-1] = last[0] if last else ''
        else:
            self.mods = ''
        self.ops = ops
        R = [regs_of(o) for o in ops]
        if op == 's_nop':
            self.kind = 'nop'; self.states = int(ops[0], 0) + 1
        elif op.startswith('v_mfma'):
            self.kind = 'mfma'
            self.D, self.A, self.B, self.C = R[0], R[1], R[2], R[3]
            self.w = R[0]; self.r = R[1] + R[2] + R[3]
            self.passes = 8 if '32x32' in op else 4
        elif op.startswith('v_'):
            self.kind = 'valu'
            self.trans = op.replace('_e32', '').replace('_e64', '') in TRANS
            self.dpp = ('dpp' in op) or ('quad_perm' in self.mods) or ('row_' in self.mods)
            self.dot = op.startswith('v_dot')
            self.perml = op.startswith('v_permlane')
            self.rdl = op.startswith('v_readlane') or op.startswith('v_readfirstlane')
            if self.perml:
                self.w = R[0] + R[1]; self.r = R[0] + R[1]
            elif op.startswith(('v_add_co', 'v_sub_co', 'v_subrev_co', 'v_addc_co', 'v_subb_co', 'v_mad_u64', 'v_div_scale')):
                self.w = R[0] + R[1]; self.r = sum(R[2:], [])
            else:
                self.w = R[0]; self.r = sum(R[1:], [])
                if op.startswith(('v_fmac', 'v_dot2c', 'v_pk_fmac', 'v_writelane')) or self.dpp:
                    self.r = self.r + R[0]
                if op.startswith('v_cndmask') and len(ops) == 3:
                    self.r.append(('vcc', 0))
        elif op.startswith(('buffer_', 'global_', 'flat_')):
            self.kind = 'vmem'
            self.lds = ' lds' in (' ' + self.mods)
            isstore = 'store' in op or ('atomic' in op)
            self.wide = isstore and (op.endswith('x4') or op.endswith('x3'))
            if isstore or self.lds:
                self.r = sum(R, [])
                self.data = R[0] if op.startswith('buffer_') else R[1]
                if self.lds: self.r.append(('m0', 0))
                if 'atomic' in op and 'sc0' in self.mods:
                    self.w = R[0]
            else:
                self.w = R[0]; self.r = sum(R[1:], [])
                if 'd16' in op: self.r = self.r + R[0]
        elif op.startswith('ds_'):
            self.kind = 'ds'
            if op.startswith(('ds_read', 'ds_bpermute', 'ds_permute', 'ds_swizzle')) or '_rtn' in op:
                self.w = R[0]; self.r = sum(R[1:], [])
            else:
                self.r = sum(R, [])
        elif op.startswith('s_'):
            self.kind = 'salu'
            if op.startswith(('s_cmp', 's_cbranch', 's_branch', 's_waitcnt', 's_barrier', 's_endpgm', 's_setprio', 's_sleep', 's_bitcmp')):
                self.r = sum(R, [])
            else:
                self.w = R[0] if R else []; self.r = sum(R[1:], [])
                if 'saveexec' in op: self.w = self.w + [('exec', 0)]
        else:
            raise ValueError("unknown instr: " + text)

def ov(a, b):
    return bool(set(a) & set(b))

def need(p, c):
    n = 0
    isS = lambda regs: [x for x in regs if x[0] in ('s', 'vcc')]
    isV = lambda regs: [x for x in regs if x[0] in ('v', 'a')]
    if p.kind == 'valu':
        pw = isV(p.w); ps = isS(p.w)
        if c.kind == 'mfma' and ov(pw, c.r): n = max(n, 2)
        if c.kind == 'valu':
            if p.trans and not c.trans and ov(pw, c.r): n = max(n, 1)
            if p.trans and c.trans and ov(pw, c.r): n = max(n, 1)
            if c.dpp and ov(pw, c.r): n = max(n, 2)
            if c.rdl and ov(pw, c.r): n = max(n, 1)
            if c.perml and ov(pw, c.r): n = max(n, 2)
            if ov(ps, c.r): n = max(n, 4 if c.rdl or c.op.startswith('v_writelane') else 2)
            if p.dot:
                same = c.op == p.op
                if same:
                    srcab = [x for x in c.r if x not in c.w] if c.op.startswith('v_dot2c') else regs_of(c.ops[1]) + regs_of(c.ops[2])
                    if ov(pw, srcab): n = max(n, 3)
                elif ov(pw, c.r + c.w): n = max(n, 3)
            if ('sdwa' in p.op or 'op_sel' in p.mods and not p.op.startswith('v_pk')) and ov(pw, c.r + c.w): n = max(n, 1)
        if p.dot and c.kind in ('vmem', 'ds', 'mfma') and ov(pw, c.r + c.w): n = max(n, 3)
        if p.trans and c.kind in ('vmem', 'ds') and ov(pw, c.r): n = max(n, 1)
        if c.kind == 'vmem' and ov(ps, c.r): n = max(n, 5)
        if c.kind == 'salu' and ov(ps, c.r): n = max(n, 3)
        if ('exec', 0) in p.w: n = max(n, 5)
    elif p.kind == 'mfma':
        big = {4: 8, 8: 12}[p.passes]; part = {4: 6, 8: 10}[p.passes]; war = {4: 3, 8: 7}[p.passes]
        if c.kind == 'mfma':
            if ov(p.D, c.A + c.B): n = max(n, big)
            if ov(p.D, c.C) and not (p.D == c.C and p.passes == c.passes): n = max(n, part)
            if ov(p.D, c.D) and p.D != c.D: n = max(n, part)
        elif c.kind in ('valu', 'vmem', 'ds'):
            if ov(p.D, c.r + c.w): n = max(n, big)
            if c.kind == 'valu' and ov(p.C, c.w): n = max(n, war)
            if c.kind in ('vmem', 'ds') and ov(p.C, c.w): n = max(n, war)
    elif p.kind == 'vmem':
        if getattr(p, 'wide', False) and ov(p.data, c.w):
            n = max(n, 2)
    elif p.kind == 'ds':
        if p.op in ('ds_write_b128', 'ds_write_b96') and c.kind == 'valu' and ov(p.r, c.w):
            n = max(n, 1)
    elif p.kind == 'salu':
        if ('m0', 0) in p.w and ('m0', 0) in c.r: n = max(n, 1)
    return n

def pad(lines):
    out = []
    hist = []
    pos = 0
    for t in lines:
        ins = Ins(t)
        if ins.label:
            out.append(t); continue
        req = 0
        for (p, pp) in hist:
            gap = pos - pp
            req = max(req, need(p, ins) - gap)
        while req > 0:
            k = min(req, 16)
            out.append("    s_nop %d" % (k - 1)); pos += k; req -= k
        out.append(t)
        pos += ins.states
        hist.append((ins, pos))
        hist = [(p, pp) for (p, pp) in hist if pos - pp < 20]
    return out

class Asm:
    def __init__(self):
        self.lines = []
    def __call__(self, s):
        for l in s.strip('\n').split('\n'):
            l = l.strip()
            if not l: continue
            if l.endswith(':') or l.startswith('.'):
                self.lines.append(l)
            else:
                self.lines.append('    ' + l)
    def comment(self, s):
        self.lines.append('    ; ' + s)
    def text(self):
        body = []
        for l in self.lines:
            body.append(l)
        return '\n'.join(pad_keep_comments(body)) + '\n'

def pad_keep_comments(lines):
    return pad(lines)

def v(i, n=1):
    return "v%d" % i if n == 1 else "v[%d:%d]" % (i, i + n - 1)
def a(i, n=1):
    return "a%d" % i if n == 1 else "a[%d:%d]" % (i, i + n - 1)
def s(i, n=1):
    return "s%d" % i if n == 1 else "s[%d:%d]" % (i, i + n - 1)

def srd(A, d, base, nbytes, off=0):
    if off:
        A(f"s_add_u32 s{d}, s{base}, {off}")
        A(f"s_addc_u32 s{d+1}, s{base+1}, 0")
    else:
        A(f"s_mov_b32 s{d}, s{base}")
        A(f"s_mov_b32 s{d+1}, s{base+1}")
    A(f"s_mov_b32 s{d+2}, {nbytes}")
    A(f"s_mov_b32 s{d+3}, 0x00020000")

def kernel_header(A, name):
    A(f".globl {name}")
    A(".p2align 8")
    A(f".type {name},@function")
    A(f"{name}:")

def descriptor(name, vgpr, sgpr, accum):
    return f""".amdhsa_kernel {name}
  .amdhsa_next_free_vgpr {vgpr}
  .amdhsa_next_free_sgpr {sgpr}
  .amdhsa_accum_offset {accum}
  .amdhsa_group_segment_fixed_size 0
  .amdhsa_kernarg_size 96
  .amdhsa_user_sgpr_count 2
  .amdhsa_user_sgpr_kernarg_segment_ptr 1
  .amdhsa_system_sgpr_workgroup_id_x 1
.end_amdhsa_kernel
"""

import os
DIAG = os.environ.get('DIAG', '')
WS_DIAG = 0x2000000
def stamp(A, kern, idx):
    if kern in DIAG.split(','):
        A(f"s_memtime s[{60+2*idx}:{61+2*idx}]")
def dump_stamps(A, kern, n, ws_pair, nwaves, vt=250):
    if kern not in DIAG.split(','):
        return
    A("s_waitcnt lgkmcnt(0) vmcnt(0)")
    A(f"s_memtime s[{60+2*n}:{61+2*n}]")
    srd(A, 56, ws_pair, 1 << 20, WS_DIAG)
    A(f"v_lshrrev_b32 v{vt}, 6, v0")
    A(f"s_mul_i32 s55, s2, {nwaves}")
    A(f"v_add_u32 v{vt}, s55, v{vt}")
    A(f"v_lshlrev_b32 v{vt}, 6, v{vt}")
    A("s_waitcnt lgkmcnt(0)")
    for k in range(n + 1):
        A(f"v_mov_b32 v{vt+1}, s{60+2*k}")
        A(f"buffer_store_dword v{vt+1}, v{vt}, s[56:59], 0 offen offset:{4*k}")
```

```python
from asmlib import *
from layout import *

K1_FFT = 128
K1_MOD = 96
K1_WPK = 144
K1_PF = 8
K1_GRID = K1_FFT + K1_MOD + K1_WPK + K1_PF
K1_LDS = 4096

def gen_k1(A, name, pf_start_label, pf_bytes):
    kernel_header(A, name)
    A(f"""
    s_cmp_ge_u32 s2, {K1_FFT}
    s_cbranch_scc1 L_k1_side
    s_load_dwordx2 s[4:5], s[0:1], {KA_X}
    s_load_dwordx2 s[6:7], s[0:1], {KA_WS}
    """)
    A("""
    s_and_b32 s20, s2, 31
    s_lshr_b32 s21, s2, 5
    v_and_b32 v1, 15, v0            ; m / n
    v_bfe_u32 v2, v0, 4, 2          ; g
    v_lshrrev_b32 v3, 6, v0         ; w
    v_lshlrev_b32 v4, 18, v2
    v_lshl_add_u32 v4, v3, 8, v4
    v_lshl_add_u32 v4, v1, 4, v4    ; g*256K + w*256 + m*16
    s_lshl_b32 s22, s20, 10
    s_waitcnt lgkmcnt(0)
    """)
    srd(A, 8, 4, 2097152)
    L = lambda kk, i: 16 + (kk * 8 + i) * 4
    for kk in range(2):
        for i in range(8):
            A(f"s_add_u32 s23, s22, {kk * 1048576 + i * 32768}")
            A(f"buffer_load_dwordx4 {v(L(kk, i), 4)}, v4, s[8:11], s23 offen")
    srd(A, 12, 6, SZ_ABUF, WS_ABUF)
    FC = lambda nt, c, kk: 128 + ((nt * 2 + c) * 2 + kk) * 4
    CS, SN = 160, 168
    A(f"""
    v_cvt_f32_u32 v5, v1
    v_mul_f32 v5, {fl(1/64)}, v5            ; n/64
    v_lshlrev_b32 v6, 3, v2
    v_cvt_f32_u32 v6, v6                     ; 8g
    v_mul_f32 v6, v5, v6                     ; n*8g/64
    """)
    for i in range(8):
        if i == 0:
            A(f"v_mov_b32 v7, v6")
        else:
            A(f"v_add_f32 v7, v7, v5")
        A(f"v_cos_f32 v{CS+i}, v7")
        A(f"v_sin_f32 v{SN+i}, v7")
    def term(kind, i):
        c_, s_ = f"v{CS+i}", f"v{SN+i}"
        return {'c': c_, '-c': '-' + c_, 's': s_, '-s': '-' + s_}[kind]
    tab = {(0, 0): ['c'] * 4, (0, 1): ['-s'] * 4,
           (1, 0): ['c', '-s', '-c', 's'], (1, 1): ['-s', '-c', 's', 'c']}
    for nt in range(2):
        for c in range(2):
            for d in range(4):
                i0, i1 = 2 * d, 2 * d + 1
                A(f"v_cvt_pk_bf16_f32 v{FC(nt,c,0)+d}, {term(tab[(nt,c)][i0%4], i0)}, {term(tab[(nt,c)][i1%4], i1)}")
    A("""
    v_cmp_eq_u32 vcc, 0, v1
    v_mov_b32 v8, 0xbf803f80
    v_and_b32 v9, 1, v1
    v_sub_u32 v9, 0, v9
    v_and_b32 v9, 0x80008000, v9
    """)
    for d in range(4):
        A(f"v_cndmask_b32 v{FC(0,1,0)+d}, v{FC(0,1,0)+d}, v8, vcc")
    for nt in range(2):
        for c in range(2):
            for d in range(4):
                A(f"v_xor_b32 v{FC(nt,c,1)+d}, v9, v{FC(nt,c,0)+d}")
    S0, Q0 = 80, 96
    for k in range(16):
        A(f"v_mov_b64 v[{S0+2*k}:{S0+2*k+1}], 0")
    A("s_mov_b32 s24, 0x3f803f80")
    A("s_mov_b32 s25, 0xffff0000")
    A("""
    v_bfe_u32 v10, v0, 3, 1                 ; b3 = stat
    v_bfe_u32 v11, v0, 2, 1                 ; b2 = kk
    v_lshlrev_b32 v10, 8, v10
    v_lshl_add_u32 v10, v3, 9, v10          ; w*512 + st*256
    v_lshl_add_u32 v10, v11, 7, v10         ; + kk*128
    v_lshl_add_u32 v10, v2, 5, v10
    v_and_b32 v11, 63, v0
    v_lshlrev_b32 v11, 2, v11
    v_lshl_add_u32 v12, v3, 9, v11
    v_lshlrev_b32 v13, 9, v3
    v_lshl_add_u32 v13, v2, 5, v13
    v_lshlrev_b32 v14, 16, v1
    v_lshl_add_u32 v15, v3, 2, v2
    v_lshl_add_u32 v14, v15, 4, v14         ; n*65536 + (4w+g)*16
    s_lshl_b32 s26, s20, 11
    s_lshl_b32 s27, s21, 9
    s_add_u32 s26, s26, s27                 ; s2*2048 + p*512
    s_add_u32 s27, s26, 0x100000
    """)
    for k in range(16):
        A(f"s_waitcnt vmcnt({15-k})")
        for j in range(4):
            A(f"v_dot2c_f32_bf16 v{S0+k}, s24, v{16+4*k+j}")
            A(f"v_dot2c_f32_bf16 v{Q0+k}, v{16+4*k+j}, v{16+4*k+j}")
    for k in range(16):
        A(f"v_add_f32_dpp v{S0+k}, v{S0+k}, v{S0+k} row_ror:8 row_mask:0xf bank_mask:0x3")
        A(f"v_add_f32_dpp v{S0+k}, v{Q0+k}, v{Q0+k} row_ror:8 row_mask:0xf bank_mask:0xc")
    for k in range(8):
        A(f"v_add_f32_dpp v{S0+k}, v{S0+k}, v{S0+k} row_shl:4 row_mask:0xf bank_mask:0x5")
        A(f"v_add_f32_dpp v{S0+k}, v{S0+8+k}, v{S0+8+k} row_shr:4 row_mask:0xf bank_mask:0xa")
    for k in range(8):
        A(f"v_add_f32_dpp v{S0+k}, v{S0+k}, v{S0+k} quad_perm:[1,0,3,2] row_mask:0xf bank_mask:0xf")
    for k in range(8):
        A(f"v_add_f32_dpp v{S0+k}, v{S0+k}, v{S0+k} quad_perm:[2,3,0,1] row_mask:0xf bank_mask:0xf")
    A(f"ds_write_b128 v10, v[{S0}:{S0+3}]")
    A(f"ds_write_b128 v10, v[{S0+4}:{S0+7}] offset:16")
    T = lambda e, k: 176 + e * 16 + k
    for p in range(4):
        if p < 3:
            A(f"s_cmp_lg_u32 s21, {p}")
            A(f"s_cbranch_scc1 L_k1_p{p+1}")
        for k in range(16):
            A(f"v_lshlrev_b32 v{T(0,k)}, 16, v{16+4*k+p}")
            A(f"v_and_b32 v{T(1,k)}, s25, v{16+4*k+p}")
        if p < 3:
            A("s_branch L_k1_pdone")
            A(f"L_k1_p{p+1}:")
    A("L_k1_pdone:")
    A("""
    s_waitcnt lgkmcnt(0)
    s_barrier
    ds_read2st64_b32 v[96:97], v11 offset0:0 offset1:1
    ds_read2st64_b32 v[98:99], v11 offset0:2 offset1:3
    ds_read2st64_b32 v[100:101], v11 offset0:4 offset1:5
    ds_read2st64_b32 v[102:103], v11 offset0:6 offset1:7
    s_waitcnt lgkmcnt(0)
    v_pk_add_f32 v[96:97], v[96:97], v[98:99]
    v_pk_add_f32 v[100:101], v[100:101], v[102:103]
    v_pk_add_f32 v[96:97], v[96:97], v[100:101]
    """)
    A(f"""
    v_mul_f32 v96, {fl(1/512)}, v96          ; mean
    v_mul_f32 v97, {fl(1/512)}, v97          ; E[x^2]
    v_fma_f32 v97, -v96, v96, v97
    v_max_f32 v97, 0, v97
    v_add_f32 v97, {fl(1e-5)}, v97
    v_rsq_f32 v97, v97
    v_mul_f32 v96, -1.0, v96
    v_mul_f32 v96, v96, v97                  ; -mean*rstd
    ds_write2st64_b32 v12, v97, v96 offset0:8 offset1:9
    s_waitcnt lgkmcnt(0)
    """)
    for kk in range(2):
        for h in range(2):
            A(f"ds_read_b128 v[{80+kk*8+h*4}:{80+kk*8+h*4+3}], v13 offset:{2048 + kk*128 + h*16}")
            A(f"ds_read_b128 v[{96+kk*8+h*4}:{96+kk*8+h*4+3}], v13 offset:{2048 + 256 + kk*128 + h*16}")
    DF = lambda e, kk: 16 + (e * 2 + kk) * 4
    ACC = lambda e, nt, c: 32 + ((e * 2 + nt) * 2 + c) * 4
    for kk in range(2):
        A(f"s_waitcnt lgkmcnt({4 if kk == 0 else 0})")
        for e in range(2):
            for d in range(4):
                k = kk * 8 + 2 * d
                A(f"v_pk_fma_f32 v[{T(e,k)}:{T(e,k)+1}], v[{T(e,k)}:{T(e,k)+1}], v[{80+k}:{81+k}], v[{96+k}:{97+k}]")
            for d in range(4):
                k = kk * 8 + 2 * d
                A(f"v_cvt_pk_bf16_f32 v{DF(e,kk)+d}, v{T(e,k)}, v{T(e,k)+1}")
        for e in range(2):
            for nt in range(2):
                for c in range(2):
                    cin = "0" if kk == 0 else v(ACC(e, nt, c), 4)
                    A(f"v_mfma_f32_16x16x32_bf16 {v(ACC(e,nt,c),4)}, {v(DF(e,kk),4)}, {v(FC(nt,c,kk),4)}, {cin}")
    for e in range(2):
        for nt in range(2):
            o = 64 + (e * 2 + nt) * 4
            for r in range(4):
                A(f"v_cvt_pk_bf16_f32 v{o+r}, v{ACC(e,nt,0)+r}, v{ACC(e,nt,1)+r}")
            A(f"buffer_store_dwordx4 {v(o,4)}, v14, s[12:15], s{26+nt} offen offset:{e*256}")
    A("s_endpgm")

    A("L_k1_side:")
    A(f"""
    s_cmp_ge_u32 s2, {K1_FFT + K1_MOD}
    s_cbranch_scc1 L_k1_wpk
    s_load_dwordx4 s[4:7], s[0:1], {KA_C}     ; c, w_mod
    s_load_dwordx2 s[16:17], s[0:1], {KA_WS}
    s_sub_u32 s20, s2, {K1_FFT}
    s_and_b32 s21, s20, 7
    s_lshr_b32 s22, s20, 4
    s_lshl_b32 s22, s22, 3
    s_add_u32 s21, s21, s22
    s_lshl_b32 s21, s21, 1
    s_bfe_u32 s22, s20, 0x10003
    s_add_u32 s21, s21, s22                   ; cg 0..95
    v_and_b32 v1, 3, v0                       ; cq
    v_lshrrev_b32 v2, 2, v0                   ; rg 0..63
    v_mul_u32_u24 v3, 6144, v2
    v_lshl_add_u32 v3, v1, 4, v3
    v_lshlrev_b32 v4, 1, v2
    s_lshl_b32 s22, s21, 6
    s_waitcnt lgkmcnt(0)
    """)
    srd(A, 8, 6, 512 * 6144)
    srd(A, 12, 4, 1024)
    for j in range(8):
        A(f"buffer_load_ushort v{8+j}, v4, s[12:15], 0 offen offset:{j*128}")
    for j in range(8):
        A(f"s_add_u32 s23, s22, {j * 64 * 6144}")
        A(f"buffer_load_dwordx4 {v(16+4*j,4)}, v3, s[8:11], s23 offen")
    srd(A, 12, 16, SZ_MOD, WS_MOD)
    A("s_mov_b32 s25, 0xffff0000")
    A("s_waitcnt vmcnt(8)")
    for j in range(8):
        A(f"v_lshlrev_b32 v{8+j}, 16, v{8+j}")
        A(f"v_mul_f32 v{48+j}, {fl(-1.4426950408889634)}, v{8+j}")
        A(f"v_exp_f32 v{48+j}, v{48+j}")
    for j in range(8):
        A(f"v_add_f32 v{48+j}, 1.0, v{48+j}")
        A(f"v_rcp_f32 v{48+j}, v{48+j}")
    for j in range(8):
        A(f"v_mul_f32 v{8+j}, v{8+j}, v{48+j}")
        A(f"v_cvt_pk_bf16_f32 v{8+j}, v{8+j}, v{8+j}")
        A(f"v_and_b32 v{8+j}, s25, v{8+j}")
    for j in range(8):
        A(f"s_waitcnt vmcnt({7-j})")
        for q in range(4):
            A(f"v_lshlrev_b32 v56, 16, v{16+4*j+q}")
            A(f"v_and_b32 v57, s25, v{16+4*j+q}")
            if j == 0:
                A(f"v_mul_f32 v{48+2*q}, v56, v{8+j}")
                A(f"v_mul_f32 v{49+2*q}, v57, v{8+j}")
            else:
                A(f"v_fmac_f32 v{48+2*q}, v56, v{8+j}")
                A(f"v_fmac_f32 v{49+2*q}, v57, v{8+j}")
    for rot in (4, 8):
        for q in range(8):
            A(f"v_add_f32_dpp v{48+q}, v{48+q}, v{48+q} row_ror:{rot} row_mask:0xf bank_mask:0xf")
    A("""
    v_lshrrev_b32 v5, 4, v0
    v_lshlrev_b32 v5, 7, v5
    v_lshl_add_u32 v5, v1, 5, v5
    ds_write_b128 v5, v[48:51]
    ds_write_b128 v5, v[52:55] offset:16
    v_lshlrev_b32 v6, 2, v0
    s_waitcnt lgkmcnt(0)
    s_barrier
    v_cmp_gt_u32 vcc, 32, v0
    s_and_saveexec_b64 s[26:27], vcc
    s_cbranch_execz L_k1_end
    """)
    for k in range(8):
        A(f"ds_read2_b32 v[{16+2*k}:{17+2*k}], v6 offset0:{64*k} offset1:{64*k+32}") if 64*k+32 < 256 else \
            A(f"ds_read2_b32 v[{16+2*k}:{17+2*k}], v7 offset0:{64*(k-4)} offset1:{64*(k-4)+32}")
        if k == 0:
            A("v_add_u32 v7, 1024, v6")
    A("s_waitcnt lgkmcnt(0)")
    for k in (4, 2, 1):
        for q in range(k):
            A(f"v_pk_add_f32 v[{16+2*q}:{17+2*q}], v[{16+2*q}:{17+2*q}], v[{16+2*(q+k)}:{17+2*(q+k)}]")
    A(f"""
    v_add_f32 v16, v16, v17
    v_cvt_pk_bf16_f32 v16, v16, v16
    v_and_b32 v16, s25, v16
    s_lshr_b32 s23, s21, 4
    s_cmp_eq_u32 s23, 1
    s_cselect_b32 s24, 1.0, 0
    s_cmp_eq_u32 s23, 4
    s_cselect_b32 s24, 1.0, s24
    v_add_f32 v16, s24, v16
    v_cvt_pk_bf16_f32 v16, v16, v16
    v_and_b32 v16, s25, v16
    s_and_b32 s22, s21, 15
    s_lshl_b32 s22, s22, 5
    v_add_u32 v17, s22, v0                    ; d
    v_and_b32 v18, 7, v17
    v_lshlrev_b32 v18, 6, v18
    v_lshrrev_b32 v19, 7, v17
    v_lshl_add_u32 v18, v19, 4, v18
    v_bfe_u32 v19, v17, 3, 2
    v_lshl_add_u32 v18, v19, 2, v18
    v_bfe_u32 v20, v17, 5, 2
    v_add_u32 v18, v18, v20                   ; posA
    v_and_b32 v20, 0x1c0, v17
    v_lshl_add_u32 v20, v19, 4, v20
    v_and_b32 v19, 3, v17
    v_lshl_add_u32 v20, v19, 2, v20
    v_bfe_u32 v19, v17, 5, 1
    v_lshl_add_u32 v20, v19, 1, v20
    v_bfe_u32 v19, v17, 2, 1
    v_add_u32 v20, v20, v19                   ; posC
    s_cmp_lt_u32 s23, 2
    s_cselect_b64 vcc, -1, 0
    v_cndmask_b32 v17, v17, v18, vcc
    s_cmp_eq_u32 s23, 2
    s_cselect_b64 vcc, -1, 0
    v_cndmask_b32 v17, v17, v20, vcc
    v_lshlrev_b32 v17, 2, v17
    s_lshl_b32 s22, s23, 11                   ; chunk*2048
    buffer_store_dword v16, v17, s[12:15], s22 offen
    s_endpgm
    """)
    A("L_k1_wpk:")
    A(f"""
    s_cmp_ge_u32 s2, {K1_FFT + K1_MOD + K1_WPK}
    s_cbranch_scc1 L_k1_pf
    s_load_dwordx4 s[4:7], s[0:1], {KA_WR}    ; w_r, w_i
    s_load_dwordx2 s[16:17], s[0:1], {KA_WS}
    s_sub_u32 s20, s2, {K1_FFT + K1_MOD}
    s_and_b32 s21, s20, 7
    s_lshr_b32 s22, s20, 4
    s_lshl_b32 s22, s22, 3
    s_add_u32 s21, s21, s22                   ; kappa
    s_cmp_gt_u32 s21, 64
    s_cbranch_scc1 L_k1_end
    s_bfe_u32 s22, s20, 0x10003               ; half
    v_lshrrev_b32 v3, 6, v0
    v_and_b32 v1, 63, v0                      ; lane
    v_readfirstlane_b32 s23, v3
    s_lshl_b32 s22, s22, 2
    s_add_u32 s22, s22, s23                   ; w2 0..7
    v_lshlrev_b32 v2, 1, v1
    v_sub_u32 v3, 128, v2
    v_lshlrev_b32 v4, 4, v1
    v_mov_b32 v5, 0
    s_waitcnt lgkmcnt(0)
    """)
    WSZ = 2048 * 514
    srd(A, 8, 4, WSZ)
    srd(A, 12, 6, WSZ)
    for jt in range(2):
        A(f"""
        s_lshl_b32 s24, s22, 8
        s_add_u32 s24, s24, {128*jt}
        s_add_u32 s24, s24, s21               ; ks
        s_sub_u32 s25, 2048, s24
        s_and_b32 s25, s25, 2047              ; nks
        s_mul_i32 s{28+2*jt}, s24, 514
        s_mul_i32 s{29+2*jt}, s25, 514
        """)
        sd, sm = f"s{28+2*jt}", f"s{29+2*jt}"
        for mt in range(2):
            q = 16 + (jt * 2 + mt) * 4
            for r in range(2):
                off = (64 * mt + 128 * r) * 2
                A(f"buffer_load_ushort v{q+r}, v2, s[8:11], {sd} offen offset:{off}")
                A(f"buffer_load_ushort v{q+r+32}, v2, s[12:15], {sd} offen offset:{off}")
            for r in range(2, 4):
                off = (448 - 64 * mt - 128 * r) * 2
                A(f"buffer_load_ushort v{q+r}, v3, s[8:11], {sm} offen offset:{off}")
                A(f"buffer_load_ushort v{q+r+32}, v3, s[12:15], {sm} offen offset:{off}")
        e = 32 + jt * 2
        A(f"buffer_load_ushort v{e}, v5, s[8:11], {sm} offen")
        A(f"buffer_load_ushort v{e+32}, v5, s[12:15], {sm} offen")
        A(f"buffer_load_ushort v{e+1}, v5, s[8:11], {sd} offen offset:512")
        A(f"buffer_load_ushort v{e+33}, v5, s[12:15], {sd} offen offset:512")
    srd(A, 8, 16, SZ_WPK, WS_WPK)
    A("""
    s_lshl_b32 s24, s21, 15
    s_lshl_b32 s25, s22, 12
    s_add_u32 s24, s24, s25                   ; kappa*32768 + w2*4096
    s_mov_b32 s25, 0xffff0000
    s_brev_b32 s26, 1                         ; 0x80000000
    v_cmp_eq_u32 vcc, 0, v1
    """)
    for jt in range(2):
        A(f"s_waitcnt vmcnt({20 if jt == 0 else 2})")
        e = 32 + jt * 2
        for x in list(range(16 + jt * 8, 24 + jt * 8)) + [e, e + 1]:
            A(f"v_lshl_or_b32 v{x}, v{x+32}, 16, v{x}")
        for mt in range(2):
            q = 16 + (jt * 2 + mt) * 4
            A(f"v_xor_b32 v{q+2}, s26, v{q+2}")
            A(f"v_xor_b32 v{q+3}, s26, v{q+3}")
        q = 16 + jt * 8
        A(f"v_xor_b32 v{e}, s26, v{e}")
        for (x, y) in ((q, e), (q + 2, e + 1)):
            A(f"""
            v_lshlrev_b32 v40, 16, v{x}
            v_lshlrev_b32 v41, 16, v{y}
            v_and_b32 v42, s25, v{x}
            v_and_b32 v43, s25, v{y}
            v_add_f32 v40, v40, v41
            v_add_f32 v42, v42, v43
            v_mul_f32 v40, 0.5, v40
            v_mul_f32 v42, 0.5, v42
            v_cvt_pk_bf16_f32 v40, v40, v42
            v_cndmask_b32 v{x}, v{x}, v40, vcc
            """)
        for mt in range(2):
            q = 16 + (jt * 2 + mt) * 4
            A(f"buffer_store_dwordx4 {v(q,4)}, v4, s[8:11], s24 offen offset:{(jt*2+mt)*1024}")
    A("s_endpgm")
    A("L_k1_pf:")
    A(f"""
    s_cmp_ge_u32 s2, {K1_GRID}
    s_cbranch_scc1 L_k1_end
    s_getpc_b64 s[4:5]
    L_k1_pc:
    s_add_u32 s4, s4, {pf_start_label}-L_k1_pc
    s_addc_u32 s5, s5, 0
    v_lshlrev_b32 v1, 4, v0
    """)
    n = (pf_bytes + 4095) // 4096
    for i in range(n):
        A(f"global_load_dwordx4 v[4:7], v1, s[4:5]")
        if i + 1 < n:
            A("v_add_u32 v1, 0x1000, v1")
    A("s_waitcnt vmcnt(0)")
    A("L_k1_end:")
    A("s_endpgm")
    return descriptor(name, 208, 40, 208)
```

```python
WS_MOD  = 0x0
WS_CSB  = 0x4000
WS_ABUF = 0x10000
WS_WPK  = 0x210000
WS_CBUF = 0x430000
WS_WG1  = 0x650000
WS_WD   = 0x910000
WS_X1F  = 0xA90000
WS_PBUF = 0xC90000
WS_END  = 0x1C90000
SZ_MOD = 3072 * 4
SZ_CSB = 88 * 256
SZ_ABUF = 32 * 32 * 2048
SZ_WPK = 65 * 32768
SZ_CBUF = 16 * 65 * 2048
SZ_WG1 = 88 * 32768
SZ_WD = 8 * 6 * 32 * 1024
SZ_X1F = 2 << 20
SZ_PBUF = 16 << 20
assert WS_ABUF + SZ_ABUF <= WS_WPK and WS_WPK + SZ_WPK <= WS_CBUF and WS_CBUF + SZ_CBUF <= WS_WG1
assert WS_WG1 + SZ_WG1 <= WS_WD and WS_WD + SZ_WD <= WS_X1F and WS_X1F + SZ_X1F <= WS_PBUF
KA_X, KA_WR, KA_WI, KA_BX, KA_WG, KA_WU, KA_WDN, KA_C, KA_WMOD, KA_OUT, KA_DBG, KA_WS = [8 * i for i in range(12)]
```

```python
import re, struct

def f32bits(x):
    return struct.unpack('<I', struct.pack('<f', x))[0]
def fl(x):
    return "0x%08x" % f32bits(x)

REG_RE = re.compile(r'\b([vas])(\d+)\b|\b([vas])\[(\d+):(\d+)\]|\b(vcc|exec|m0|scc)\b')

def regs_of(op):
    out = []
    for m in REG_RE.finditer(op):
        if m.group(1):
            out.append((m.group(1), int(m.group(2))))
        elif m.group(3):
            out += [(m.group(3), i) for i in range(int(m.group(4)), int(m.group(5)) + 1)]
        else:
            out.append((m.group(6), 0))
    return out

def split_ops(s):
    ops, depth, cur = [], 0, ''
    for ch in s:
        if ch == '[': depth += 1
        if ch == ']': depth -= 1
        if ch == ',' and depth == 0:
            ops.append(cur.strip()); cur = ''
        else:
            cur += ch
    if cur.strip(): ops.append(cur.strip())
    return ops

TRANS = ('v_exp_f32', 'v_log_f32', 'v_rcp_f32', 'v_rsq_f32', 'v_sqrt_f32', 'v_sin_f32', 'v_cos_f32', 'v_rcp_iflag_f32')

class Ins:
    def __init__(self, text):
        self.text = text
        t = text.split(';')[0].strip()
        self.label = t.endswith(':') or t.startswith('.') or t == ''
        self.kind = None
        self.w, self.r = [], []
        self.states = 1
        if self.label:
            self.states = 0
            return
        parts = t.split(None, 1)
        op = parts[0]; rest = parts[1] if len(parts) > 1 else ''
        self.op = op
        ops = split_ops(rest)
        if ops:
            last = ops[-1].split()
            self.mods = ' '.join(last[1:])
            ops[-1] = last[0] if last else ''
        else:
            self.mods = ''
        self.ops = ops
        R = [regs_of(o) for o in ops]
        if op == 's_nop':
            self.kind = 'nop'; self.states = int(ops[0], 0) + 1
        elif op.startswith('v_mfma'):
            self.kind = 'mfma'
            self.D, self.A, self.B, self.C = R[0], R[1], R[2], R[3]
            self.w = R[0]; self.r = R[1] + R[2] + R[3]
            self.passes = 8 if '32x32' in op else 4
        elif op.startswith('v_'):
            self.kind = 'valu'
            self.trans = op.replace('_e32', '').replace('_e64', '') in TRANS
            self.dpp = ('dpp' in op) or ('quad_perm' in self.mods) or ('row_' in self.mods)
            self.dot = op.startswith('v_dot')
            self.perml = op.startswith('v_permlane')
            self.rdl = op.startswith('v_readlane') or op.startswith('v_readfirstlane')
            if self.perml or op.startswith('v_swap'):
                self.w = R[0] + R[1]; self.r = R[0] + R[1]
            elif op.startswith(('v_add_co', 'v_sub_co', 'v_subrev_co', 'v_addc_co', 'v_subb_co', 'v_mad_u64', 'v_div_scale')):
                self.w = R[0] + R[1]; self.r = sum(R[2:], [])
            else:
                self.w = R[0]; self.r = sum(R[1:], [])
                if op.startswith(('v_fmac', 'v_dot2c', 'v_pk_fmac', 'v_writelane')) or self.dpp:
                    self.r = self.r + R[0]
                if op.startswith('v_cndmask') and len(ops) == 3:
                    self.r.append(('vcc', 0))
        elif op.startswith(('buffer_', 'global_', 'flat_')):
            self.kind = 'vmem'
            self.lds = ' lds' in (' ' + self.mods)
            isstore = 'store' in op or ('atomic' in op)
            self.wide = isstore and (op.endswith('x4') or op.endswith('x3'))
            if isstore or self.lds:
                self.r = sum(R, [])
                self.data = R[0] if op.startswith('buffer_') else R[1]
                if self.lds: self.r.append(('m0', 0))
                if 'atomic' in op and 'sc0' in self.mods:
                    self.w = R[0]
            else:
                self.w = R[0]; self.r = sum(R[1:], [])
                if 'd16' in op: self.r = self.r + R[0]
        elif op.startswith('ds_'):
            self.kind = 'ds'
            if op.startswith(('ds_read', 'ds_bpermute', 'ds_permute', 'ds_swizzle')) or '_rtn' in op:
                self.w = R[0]; self.r = sum(R[1:], [])
            else:
                self.r = sum(R, [])
        elif op.startswith('s_'):
            self.kind = 'salu'
            if op.startswith(('s_cmp', 's_cbranch', 's_branch', 's_waitcnt', 's_barrier', 's_endpgm', 's_setprio', 's_sleep', 's_bitcmp')):
                self.r = sum(R, [])
            else:
                self.w = R[0] if R else []; self.r = sum(R[1:], [])
                if 'saveexec' in op: self.w = self.w + [('exec', 0)]
        else:
            raise ValueError("unknown instr: " + text)

def ov(a, b):
    return bool(set(a) & set(b))

def need(p, c):
    n = 0
    isS = lambda regs: [x for x in regs if x[0] in ('s', 'vcc')]
    isV = lambda regs: [x for x in regs if x[0] in ('v', 'a')]
    if p.kind == 'valu':
        pw = isV(p.w); ps = isS(p.w)
        if c.kind == 'mfma' and ov(pw, c.r): n = max(n, 2)
        if c.kind == 'valu':
            if p.trans and not c.trans and ov(pw, c.r): n = max(n, 1)
            if p.trans and c.trans and ov(pw, c.r): n = max(n, 1)
            if c.dpp and ov(pw, c.r): n = max(n, 2)
            if c.rdl and ov(pw, c.r): n = max(n, 1)
            if c.perml and ov(pw, c.r): n = max(n, 2)
            if ov(ps, c.r): n = max(n, 4 if c.rdl or c.op.startswith('v_writelane') else 2)
            if p.dot:
                same = c.op == p.op
                if same:
                    srcab = [x for x in c.r if x not in c.w] if c.op.startswith('v_dot2c') else regs_of(c.ops[1]) + regs_of(c.ops[2])
                    if ov(pw, srcab): n = max(n, 3)
                elif ov(pw, c.r + c.w): n = max(n, 3)
            if ('sdwa' in p.op or 'op_sel' in p.mods and not p.op.startswith('v_pk')) and ov(pw, c.r + c.w): n = max(n, 1)
        if p.dot and c.kind in ('vmem', 'ds', 'mfma') and ov(pw, c.r + c.w): n = max(n, 3)
        if p.trans and c.kind in ('vmem', 'ds') and ov(pw, c.r): n = max(n, 1)
        if c.kind == 'vmem' and ov(ps, c.r): n = max(n, 5)
        if c.kind == 'salu' and ov(ps, c.r): n = max(n, 3)
        if ('exec', 0) in p.w: n = max(n, 5)
    elif p.kind == 'mfma':
        big = {4: 8, 8: 12}[p.passes]; part = {4: 6, 8: 10}[p.passes]; war = {4: 3, 8: 7}[p.passes]
        if c.kind == 'mfma':
            if ov(p.D, c.A + c.B): n = max(n, big)
            if ov(p.D, c.C) and not (p.D == c.C and p.passes == c.passes): n = max(n, part)
            if ov(p.D, c.D) and p.D != c.D: n = max(n, part)
        elif c.kind in ('valu', 'vmem', 'ds'):
            if ov(p.D, c.r + c.w): n = max(n, big)
            if c.kind == 'valu' and ov(p.C, c.w): n = max(n, war)
            if c.kind in ('vmem', 'ds') and ov(p.C, c.w): n = max(n, war)
    elif p.kind == 'vmem':
        if getattr(p, 'wide', False) and ov(p.data, c.w):
            n = max(n, 2)
    elif p.kind == 'ds':
        if p.op in ('ds_write_b128', 'ds_write_b96') and c.kind == 'valu' and ov(p.r, c.w):
            n = max(n, 1)
    elif p.kind == 'salu':
        if ('m0', 0) in p.w and ('m0', 0) in c.r: n = max(n, 1)
    return n

def pad(lines):
    out = []
    hist = []
    pos = 0
    for t in lines:
        ins = Ins(t)
        if ins.label:
            out.append(t); continue
        req = 0
        for (p, pp) in hist:
            gap = pos - pp
            req = max(req, need(p, ins) - gap)
        while req > 0:
            k = min(req, 16)
            out.append("    s_nop %d" % (k - 1)); pos += k; req -= k
        out.append(t)
        pos += ins.states
        hist.append((ins, pos))
        hist = [(p, pp) for (p, pp) in hist if pos - pp < 20]
    return out

class Asm:
    def __init__(self):
        self.lines = []
    def __call__(self, s):
        for l in s.strip('\n').split('\n'):
            l = l.strip()
            if not l: continue
            if l.endswith(':') or l.startswith('.'):
                self.lines.append(l)
            else:
                self.lines.append('    ' + l)
    def comment(self, s):
        self.lines.append('    ; ' + s)
    def text(self):
        return '\n'.join(pad_keep_comments(resolve_waits(self.lines))) + '\n'
    def ext(self, lst):
        for l in lst: self(l)

def pad_keep_comments(lines):
    return pad(lines)

def v(i, n=1):
    return "v%d" % i if n == 1 else "v[%d:%d]" % (i, i + n - 1)
def a(i, n=1):
    return "a%d" % i if n == 1 else "a[%d:%d]" % (i, i + n - 1)
def s(i, n=1):
    return "s%d" % i if n == 1 else "s[%d:%d]" % (i, i + n - 1)

def srd(A, d, base, nbytes, off=0):
    if off:
        A(f"s_add_u32 s{d}, s{base}, {off}")
        A(f"s_addc_u32 s{d+1}, s{base+1}, 0")
    else:
        A(f"s_mov_b32 s{d}, s{base}")
        A(f"s_mov_b32 s{d+1}, s{base+1}")
    A(f"s_mov_b32 s{d+2}, {nbytes}")
    A(f"s_mov_b32 s{d+3}, 0x00020000")

def kernel_header(A, name):
    A(f".globl {name}")
    A(".p2align 8")
    A(f".type {name},@function")
    A(f"{name}:")

def descriptor(name, vgpr, sgpr, accum):
    return f""".amdhsa_kernel {name}
  .amdhsa_next_free_vgpr {vgpr}
  .amdhsa_next_free_sgpr {sgpr}
  .amdhsa_accum_offset {accum}
  .amdhsa_group_segment_fixed_size 0
  .amdhsa_kernarg_size 96
  .amdhsa_user_sgpr_count 2
  .amdhsa_user_sgpr_kernarg_segment_ptr 1
  .amdhsa_system_sgpr_workgroup_id_x 1
.end_amdhsa_kernel
"""

import os
DIAG = os.environ.get('DIAG', '')
WS_DIAG = 0x4000000
def stamp(A, kern, idx):
    if kern in DIAG.split(','):
        A(f"s_memtime s[{60+2*idx}:{61+2*idx}]")
def dump_stamps(A, kern, n, ws_pair, nwaves, vt=250):
    if kern not in DIAG.split(','):
        return
    A("s_waitcnt lgkmcnt(0) vmcnt(0)")
    A(f"s_memtime s[{60+2*n}:{61+2*n}]")
    srd(A, 56, ws_pair, 1 << 20, WS_DIAG)
    A(f"v_lshrrev_b32 v{vt}, 6, v0")
    A(f"s_mul_i32 s55, s2, {nwaves}")
    A(f"v_add_u32 v{vt}, s55, v{vt}")
    A(f"v_lshlrev_b32 v{vt}, 6, v{vt}")
    A("s_waitcnt lgkmcnt(0)")
    for k in range(n + 1):
        A(f"v_mov_b32 v{vt+1}, s{60+2*k}")
        A(f"buffer_store_dword v{vt+1}, v{vt}, s[56:59], 0 offen offset:{4*k}")


def resolve_waits(lines):
    out = []
    VQ, LQ = [], []
    saved = {}
    for l in lines:
        t = l.strip()
        if t.startswith(';@'):
            p = t[2:].split()
            if p[0] == 'save': saved[p[1]] = (list(VQ), list(LQ))
            elif p[0] == 'restore': VQ, LQ = list(saved[p[1]][0]), list(saved[p[1]][1])
            elif p[0] == 'reset': VQ, LQ = [], []
            elif p[0] in ('wv', 'wl'):
                Q = VQ if p[0] == 'wv' else LQ
                idx = [i for i, x in enumerate(Q) if x in p[1:]]
                if idx:
                    n = len(Q) - 1 - max(idx)
                    lim = 63 if p[0] == 'wv' else 15
                    n = min(n, lim)
                    out.append(f"    s_waitcnt {'vmcnt' if p[0] == 'wv' else 'lgkmcnt'}({n})")
                    del Q[:len(Q) - n]
            else:
                raise ValueError(t)
            continue
        tag = None
        if ';@tag' in t:
            tag = t.split(';@tag')[1].split()[0]
            l = l.split(';@tag')[0].rstrip()
            t = l.strip()
        op = t.split()[0] if t and not t.startswith(';') else ''
        if op.startswith(('buffer_', 'global_')):
            if len(VQ) >= 63:
                out.append("    s_waitcnt vmcnt(62)")
                del VQ[:len(VQ) - 62]
            VQ.append(tag)
        elif op.startswith('ds_'):
            if len(LQ) >= 15:
                out.append("    s_waitcnt lgkmcnt(14)")
                del LQ[:len(LQ) - 14]
            LQ.append(tag)
        elif op == 's_waitcnt':
            m = re.search(r'vmcnt\((\d+)\)', t)
            if m and len(VQ) > int(m.group(1)): del VQ[:len(VQ) - int(m.group(1))]
            m = re.search(r'lgkmcnt\((\d+)\)', t)
            if m and len(LQ) > int(m.group(1)): del LQ[:len(LQ) - int(m.group(1))]
        elif op == 's_endpgm':
            VQ, LQ = [], []
        out.append(l)
    return out

def lines_of(s):
    return [l.strip() for l in s.strip('\n').split('\n') if l.strip()]

def interleave(main, fill, per=2, skip=0):
    out = []; fi = 0; nm = 0
    def take():
        nonlocal fi
        k = 0
        while fi < len(fill) and k < per:
            out.append(fill[fi])
            if not fill[fi].startswith(';@'): k += 1
            fi += 1
    for l in main:
        out.append(l)
        if l.startswith('v_mfma'):
            nm += 1
            if nm > skip: take()
    out += fill[fi:]
    return out

def spread(main, fill, every=None):
    real = [i for i, l in enumerate(main) if not l.startswith(';@')]
    n, k = len(real), len(fill)
    if k == 0: return list(main)
    pos = {}
    for j in range(k):
        at = real[min(n - 1, (j * n) // k)]
        pos.setdefault(at, []).append(fill[j])
    out = []
    for i, l in enumerate(main):
        out.append(l)
        for f in pos.get(i, []): out += f
    return out

def unpk(line):
    t = line.strip()
    m = re.match(r'v_pk_(mul|add|fma)_f32\s+(.*)', t)
    if not m: return [line]
    op = m.group(1)
    body = m.group(2)
    mods = dict((k, [int(x) for x in v_.split(',')]) for k, v_ in re.findall(r'(op_sel|op_sel_hi|neg_lo|neg_hi):\[([\d,]+)\]', body))
    body = re.sub(r'\s*(op_sel|op_sel_hi|neg_lo|neg_hi):\[[\d,]+\]', '', body)
    ops = split_ops(body)
    base = [int(re.match(r'v\[(\d+):', o).group(1)) for o in ops]
    n = len(ops) - 1
    sel = mods.get('op_sel', [0] * n); selh = mods.get('op_sel_hi', [1] * n)
    nl = mods.get('neg_lo', [0] * n); nh = mods.get('neg_hi', [0] * n)
    lo = [('-' if nl[i] else '') + f"v{base[i+1] + sel[i]}" for i in range(n)]
    hi = [('-' if nh[i] else '') + f"v{base[i+1] + selh[i]}" for i in range(n)]
    d = base[0]
    if any(x.lstrip('-') == f"v{d}" for x in hi):
        return [line]
    def one(dst, src):
        if op == 'fma' and src[2] == f"v{dst}" and not any(x.startswith('-') for x in src):
            return f"v_fmac_f32 v{dst}, {src[0]}, {src[1]}"
        return f"v_{op}_f32 v{dst}, " + ', '.join(src)
    return [one(d, lo), one(d + 1, hi)]
```

```python
from asmlib import *
from layout import *

K1_FFT = 128
K1_MOD = 96
K1_WPK = 144
K1_TP = 0
K1_PF = 8
K1_GRID = K1_FFT + K1_MOD + K1_WPK + K1_TP + K1_PF
K1_LDS = 4096

def gen_k1(A, name, pf_start_label, pf_bytes):
    kernel_header(A, name)
    A(f"""
    s_cmp_ge_u32 s2, {K1_FFT}
    s_cbranch_scc1 L_k1_side
    s_load_dwordx2 s[4:5], s[0:1], {KA_X}
    s_load_dwordx2 s[6:7], s[0:1], {KA_WS}
    """)
    A("""
    s_and_b32 s20, s2, 31
    s_lshr_b32 s21, s2, 5
    v_and_b32 v1, 15, v0            ; m / n
    v_bfe_u32 v2, v0, 4, 2          ; g
    v_lshrrev_b32 v3, 6, v0         ; w
    v_lshlrev_b32 v4, 18, v2
    v_lshl_add_u32 v4, v3, 8, v4
    v_lshl_add_u32 v4, v1, 4, v4    ; g*256K + w*256 + m*16
    s_lshl_b32 s22, s20, 10
    s_waitcnt lgkmcnt(0)
    """)
    srd(A, 8, 4, 2097152)
    L = lambda kk, i: 16 + (kk * 8 + i) * 4
    for kk in range(2):
        for i in range(8):
            A(f"s_add_u32 s23, s22, {kk * 1048576 + i * 32768}")
            A(f"buffer_load_dwordx4 {v(L(kk, i), 4)}, v4, s[8:11], s23 offen")
    srd(A, 12, 6, SZ_ABUF, WS_ABUF)
    FC = lambda nt, c, kk: 128 + ((nt * 2 + c) * 2 + kk) * 4
    CS, SN = 160, 168
    A(f"""
    v_cvt_f32_u32 v5, v1
    v_mul_f32 v5, {fl(1/64)}, v5            ; n/64
    v_lshlrev_b32 v6, 3, v2
    v_cvt_f32_u32 v6, v6                     ; 8g
    v_mul_f32 v6, v5, v6                     ; n*8g/64
    """)
    for i in range(8):
        if i == 0:
            A(f"v_mov_b32 v7, v6")
        else:
            A(f"v_add_f32 v7, v7, v5")
        A(f"v_cos_f32 v{CS+i}, v7")
        A(f"v_sin_f32 v{SN+i}, v7")
    def term(kind, i):
        c_, s_ = f"v{CS+i}", f"v{SN+i}"
        return {'c': c_, '-c': '-' + c_, 's': s_, '-s': '-' + s_}[kind]
    tab = {(0, 0): ['c'] * 4, (0, 1): ['-s'] * 4,
           (1, 0): ['c', '-s', '-c', 's'], (1, 1): ['-s', '-c', 's', 'c']}
    for nt in range(2):
        for c in range(2):
            for d in range(4):
                i0, i1 = 2 * d, 2 * d + 1
                A(f"v_cvt_pk_bf16_f32 v{FC(nt,c,0)+d}, {term(tab[(nt,c)][i0%4], i0)}, {term(tab[(nt,c)][i1%4], i1)}")
    A("""
    v_cmp_eq_u32 vcc, 0, v1
    v_mov_b32 v8, 0xbf803f80
    v_and_b32 v9, 1, v1
    v_sub_u32 v9, 0, v9
    v_and_b32 v9, 0x80008000, v9
    """)
    for d in range(4):
        A(f"v_cndmask_b32 v{FC(0,1,0)+d}, v{FC(0,1,0)+d}, v8, vcc")
    for nt in range(2):
        for c in range(2):
            for d in range(4):
                A(f"v_xor_b32 v{FC(nt,c,1)+d}, v9, v{FC(nt,c,0)+d}")
    S0, Q0 = 80, 96
    for k in range(16):
        A(f"v_mov_b64 v[{S0+2*k}:{S0+2*k+1}], 0")
    A("s_mov_b32 s24, 0x3f803f80")
    A("s_mov_b32 s25, 0xffff0000")
    A("""
    v_bfe_u32 v10, v0, 3, 1                 ; b3 = stat
    v_bfe_u32 v11, v0, 2, 1                 ; b2 = kk
    v_lshlrev_b32 v10, 8, v10
    v_lshl_add_u32 v10, v3, 9, v10          ; w*512 + st*256
    v_lshl_add_u32 v10, v11, 7, v10         ; + kk*128
    v_lshl_add_u32 v10, v2, 5, v10
    v_and_b32 v11, 63, v0
    v_lshlrev_b32 v11, 2, v11
    v_lshl_add_u32 v12, v3, 9, v11
    v_lshlrev_b32 v13, 9, v3
    v_lshl_add_u32 v13, v2, 5, v13
    v_lshlrev_b32 v14, 16, v1
    v_lshl_add_u32 v15, v3, 2, v2
    v_lshl_add_u32 v14, v15, 4, v14         ; n*65536 + (4w+g)*16
    s_lshl_b32 s26, s20, 11
    s_lshl_b32 s27, s21, 9
    s_add_u32 s26, s26, s27                 ; s2*2048 + p*512
    s_add_u32 s27, s26, 0x100000
    """)
    for k in range(16):
        A(f"s_waitcnt vmcnt({15-k})")
        for j in range(4):
            A(f"v_dot2c_f32_bf16 v{S0+k}, s24, v{16+4*k+j}")
            A(f"v_dot2c_f32_bf16 v{Q0+k}, v{16+4*k+j}, v{16+4*k+j}")
    for k in range(16):
        A(f"v_add_f32_dpp v{S0+k}, v{S0+k}, v{S0+k} row_ror:8 row_mask:0xf bank_mask:0x3")
        A(f"v_add_f32_dpp v{S0+k}, v{Q0+k}, v{Q0+k} row_ror:8 row_mask:0xf bank_mask:0xc")
    for k in range(8):
        A(f"v_add_f32_dpp v{S0+k}, v{S0+k}, v{S0+k} row_shl:4 row_mask:0xf bank_mask:0x5")
        A(f"v_add_f32_dpp v{S0+k}, v{S0+8+k}, v{S0+8+k} row_shr:4 row_mask:0xf bank_mask:0xa")
    for k in range(8):
        A(f"v_add_f32_dpp v{S0+k}, v{S0+k}, v{S0+k} quad_perm:[1,0,3,2] row_mask:0xf bank_mask:0xf")
    for k in range(8):
        A(f"v_add_f32_dpp v{S0+k}, v{S0+k}, v{S0+k} quad_perm:[2,3,0,1] row_mask:0xf bank_mask:0xf")
    A(f"ds_write_b128 v10, v[{S0}:{S0+3}]")
    A(f"ds_write_b128 v10, v[{S0+4}:{S0+7}] offset:16")
    T = lambda e, k: 176 + e * 16 + k
    for p in range(4):
        if p < 3:
            A(f"s_cmp_lg_u32 s21, {p}")
            A(f"s_cbranch_scc1 L_k1_p{p+1}")
        for k in range(16):
            A(f"v_lshlrev_b32 v{T(0,k)}, 16, v{16+4*k+p}")
            A(f"v_and_b32 v{T(1,k)}, s25, v{16+4*k+p}")
        if p < 3:
            A("s_branch L_k1_pdone")
            A(f"L_k1_p{p+1}:")
    A("L_k1_pdone:")
    A("""
    s_waitcnt lgkmcnt(0)
    s_barrier
    ds_read2st64_b32 v[96:97], v11 offset0:0 offset1:1
    ds_read2st64_b32 v[98:99], v11 offset0:2 offset1:3
    ds_read2st64_b32 v[100:101], v11 offset0:4 offset1:5
    ds_read2st64_b32 v[102:103], v11 offset0:6 offset1:7
    s_waitcnt lgkmcnt(0)
    v_pk_add_f32 v[96:97], v[96:97], v[98:99]
    v_pk_add_f32 v[100:101], v[100:101], v[102:103]
    v_pk_add_f32 v[96:97], v[96:97], v[100:101]
    """)
    A(f"""
    v_mul_f32 v96, {fl(1/512)}, v96          ; mean
    v_mul_f32 v97, {fl(1/512)}, v97          ; E[x^2]
    v_fma_f32 v97, -v96, v96, v97
    v_max_f32 v97, 0, v97
    v_add_f32 v97, {fl(1e-5)}, v97
    v_rsq_f32 v97, v97
    v_mul_f32 v96, -1.0, v96
    v_mul_f32 v96, v96, v97                  ; -mean*rstd
    ds_write2st64_b32 v12, v97, v96 offset0:8 offset1:9
    s_waitcnt lgkmcnt(0)
    """)
    for kk in range(2):
        for h in range(2):
            A(f"ds_read_b128 v[{80+kk*8+h*4}:{80+kk*8+h*4+3}], v13 offset:{2048 + kk*128 + h*16}")
            A(f"ds_read_b128 v[{96+kk*8+h*4}:{96+kk*8+h*4+3}], v13 offset:{2048 + 256 + kk*128 + h*16}")
    DF = lambda e, kk: 16 + (e * 2 + kk) * 4
    ACC = lambda e, nt, c: 32 + ((e * 2 + nt) * 2 + c) * 4
    for kk in range(2):
        A(f"s_waitcnt lgkmcnt({4 if kk == 0 else 0})")
        for e in range(2):
            for d in range(4):
                k = kk * 8 + 2 * d
                A(f"v_pk_fma_f32 v[{T(e,k)}:{T(e,k)+1}], v[{T(e,k)}:{T(e,k)+1}], v[{80+k}:{81+k}], v[{96+k}:{97+k}]")
            for d in range(4):
                k = kk * 8 + 2 * d
                A(f"v_cvt_pk_bf16_f32 v{DF(e,kk)+d}, v{T(e,k)}, v{T(e,k)+1}")
        for e in range(2):
            for nt in range(2):
                for c in range(2):
                    cin = "0" if kk == 0 else v(ACC(e, nt, c), 4)
                    A(f"v_mfma_f32_16x16x32_bf16 {v(ACC(e,nt,c),4)}, {v(DF(e,kk),4)}, {v(FC(nt,c,kk),4)}, {cin}")
    for e in range(2):
        for nt in range(2):
            o = 64 + (e * 2 + nt) * 4
            for r in range(4):
                A(f"v_cvt_pk_bf16_f32 v{o+r}, v{ACC(e,nt,0)+r}, v{ACC(e,nt,1)+r}")
            A(f"buffer_store_dwordx4 {v(o,4)}, v14, s[12:15], s{26+nt} offen offset:{e*256}")
    A("s_endpgm")

    A("L_k1_side:")
    A(f"""
    s_cmp_ge_u32 s2, {K1_FFT + K1_MOD}
    s_cbranch_scc1 L_k1_wpk
    s_load_dwordx4 s[4:7], s[0:1], {KA_C}     ; c, w_mod
    s_load_dwordx2 s[16:17], s[0:1], {KA_WS}
    s_sub_u32 s20, s2, {K1_FFT}
    s_and_b32 s21, s20, 7
    s_lshr_b32 s22, s20, 4
    s_lshl_b32 s22, s22, 3
    s_add_u32 s21, s21, s22
    s_lshl_b32 s21, s21, 1
    s_bfe_u32 s22, s20, 0x10003
    s_add_u32 s21, s21, s22                   ; cg 0..95
    v_and_b32 v1, 3, v0                       ; cq
    v_lshrrev_b32 v2, 2, v0                   ; rg 0..63
    v_mul_u32_u24 v3, 6144, v2
    v_lshl_add_u32 v3, v1, 4, v3
    v_lshlrev_b32 v4, 1, v2
    s_lshl_b32 s22, s21, 6
    s_waitcnt lgkmcnt(0)
    """)
    srd(A, 8, 6, 512 * 6144)
    srd(A, 12, 4, 1024)
    for j in range(8):
        A(f"buffer_load_ushort v{8+j}, v4, s[12:15], 0 offen offset:{j*128}")
    for j in range(8):
        A(f"s_add_u32 s23, s22, {j * 64 * 6144}")
        A(f"buffer_load_dwordx4 {v(16+4*j,4)}, v3, s[8:11], s23 offen")
    srd(A, 12, 16, SZ_MOD, WS_MOD)
    A("s_mov_b32 s25, 0xffff0000")
    A("s_waitcnt vmcnt(8)")
    for j in range(8):
        A(f"v_lshlrev_b32 v{8+j}, 16, v{8+j}")
        A(f"v_mul_f32 v{48+j}, {fl(-1.4426950408889634)}, v{8+j}")
        A(f"v_exp_f32 v{48+j}, v{48+j}")
    for j in range(8):
        A(f"v_add_f32 v{48+j}, 1.0, v{48+j}")
        A(f"v_rcp_f32 v{48+j}, v{48+j}")
    for j in range(8):
        A(f"v_mul_f32 v{8+j}, v{8+j}, v{48+j}")
        A(f"v_cvt_pk_bf16_f32 v{8+j}, v{8+j}, v{8+j}")
        A(f"v_and_b32 v{8+j}, s25, v{8+j}")
    for j in range(8):
        A(f"s_waitcnt vmcnt({7-j})")
        for q in range(4):
            A(f"v_lshlrev_b32 v56, 16, v{16+4*j+q}")
            A(f"v_and_b32 v57, s25, v{16+4*j+q}")
            if j == 0:
                A(f"v_mul_f32 v{48+2*q}, v56, v{8+j}")
                A(f"v_mul_f32 v{49+2*q}, v57, v{8+j}")
            else:
                A(f"v_fmac_f32 v{48+2*q}, v56, v{8+j}")
                A(f"v_fmac_f32 v{49+2*q}, v57, v{8+j}")
    for rot in (4, 8):
        for q in range(8):
            A(f"v_add_f32_dpp v{48+q}, v{48+q}, v{48+q} row_ror:{rot} row_mask:0xf bank_mask:0xf")
    A("""
    v_lshrrev_b32 v5, 4, v0
    v_lshlrev_b32 v5, 7, v5
    v_lshl_add_u32 v5, v1, 5, v5
    ds_write_b128 v5, v[48:51]
    ds_write_b128 v5, v[52:55] offset:16
    v_lshlrev_b32 v6, 2, v0
    s_waitcnt lgkmcnt(0)
    s_barrier
    v_cmp_gt_u32 vcc, 32, v0
    s_and_saveexec_b64 s[26:27], vcc
    s_cbranch_execz L_k1_end
    """)
    for k in range(8):
        A(f"ds_read2_b32 v[{16+2*k}:{17+2*k}], v6 offset0:{64*k} offset1:{64*k+32}") if 64*k+32 < 256 else \
            A(f"ds_read2_b32 v[{16+2*k}:{17+2*k}], v7 offset0:{64*(k-4)} offset1:{64*(k-4)+32}")
        if k == 0:
            A("v_add_u32 v7, 1024, v6")
    A("s_waitcnt lgkmcnt(0)")
    for k in (4, 2, 1):
        for q in range(k):
            A(f"v_pk_add_f32 v[{16+2*q}:{17+2*q}], v[{16+2*q}:{17+2*q}], v[{16+2*(q+k)}:{17+2*(q+k)}]")
    A(f"""
    v_add_f32 v16, v16, v17
    v_cvt_pk_bf16_f32 v16, v16, v16
    v_and_b32 v16, s25, v16
    s_lshr_b32 s23, s21, 4
    s_cmp_eq_u32 s23, 1
    s_cselect_b32 s24, 1.0, 0
    s_cmp_eq_u32 s23, 4
    s_cselect_b32 s24, 1.0, s24
    v_add_f32 v16, s24, v16
    v_cvt_pk_bf16_f32 v16, v16, v16
    v_and_b32 v16, s25, v16
    s_and_b32 s22, s21, 15
    s_lshl_b32 s22, s22, 5
    v_add_u32 v17, s22, v0                    ; d
    v_and_b32 v18, 7, v17
    v_lshlrev_b32 v18, 6, v18
    v_lshrrev_b32 v19, 7, v17
    v_lshl_add_u32 v18, v19, 4, v18
    v_bfe_u32 v19, v17, 3, 2
    v_lshl_add_u32 v18, v19, 2, v18
    v_bfe_u32 v20, v17, 5, 2
    v_add_u32 v18, v18, v20                   ; posA
    v_and_b32 v20, 0x183, v17
    v_bfe_u32 v19, v17, 2, 1
    v_lshl_add_u32 v20, v19, 6, v20
    v_bfe_u32 v19, v17, 3, 4
    v_lshl_add_u32 v20, v19, 2, v20           ; posC
    s_cmp_lt_u32 s23, 2
    s_cselect_b64 vcc, -1, 0
    v_cndmask_b32 v17, v17, v18, vcc
    s_cmp_eq_u32 s23, 2
    s_cselect_b64 vcc, -1, 0
    v_cndmask_b32 v17, v17, v20, vcc
    v_lshlrev_b32 v17, 2, v17
    s_lshl_b32 s22, s23, 11                   ; chunk*2048
    buffer_store_dword v16, v17, s[12:15], s22 offen
    s_endpgm
    """)
    A("L_k1_wpk:")
    A(f"""
    s_cmp_ge_u32 s2, {K1_FFT + K1_MOD + K1_WPK}
    s_cbranch_scc1 L_k1_pf
    s_load_dwordx4 s[4:7], s[0:1], {KA_WR}    ; w_r, w_i
    s_load_dwordx2 s[16:17], s[0:1], {KA_WS}
    s_sub_u32 s20, s2, {K1_FFT + K1_MOD}
    s_and_b32 s21, s20, 7
    s_lshr_b32 s22, s20, 4
    s_lshl_b32 s22, s22, 3
    s_add_u32 s21, s21, s22                   ; kappa
    s_cmp_gt_u32 s21, 64
    s_cbranch_scc1 L_k1_end
    s_bfe_u32 s22, s20, 0x10003               ; half
    v_lshrrev_b32 v3, 6, v0
    v_and_b32 v1, 63, v0                      ; lane
    v_readfirstlane_b32 s23, v3
    s_lshl_b32 s22, s22, 2
    s_add_u32 s22, s22, s23                   ; w2 0..7
    v_lshlrev_b32 v2, 1, v1
    v_sub_u32 v3, 128, v2
    v_lshlrev_b32 v4, 4, v1
    v_mov_b32 v5, 0
    s_waitcnt lgkmcnt(0)
    """)
    WSZ = 2048 * 514
    srd(A, 8, 4, WSZ)
    srd(A, 12, 6, WSZ)
    for jt in range(2):
        A(f"""
        s_lshl_b32 s24, s22, 8
        s_add_u32 s24, s24, {128*jt}
        s_add_u32 s24, s24, s21               ; ks
        s_sub_u32 s25, 2048, s24
        s_and_b32 s25, s25, 2047              ; nks
        s_mul_i32 s{28+2*jt}, s24, 514
        s_mul_i32 s{29+2*jt}, s25, 514
        """)
        sd, sm = f"s{28+2*jt}", f"s{29+2*jt}"
        for mt in range(2):
            q = 16 + (jt * 2 + mt) * 4
            for r in range(2):
                off = (64 * mt + 128 * r) * 2
                A(f"buffer_load_ushort v{q+r}, v2, s[8:11], {sd} offen offset:{off}")
                A(f"buffer_load_ushort v{q+r+32}, v2, s[12:15], {sd} offen offset:{off}")
            for r in range(2, 4):
                off = (448 - 64 * mt - 128 * r) * 2
                A(f"buffer_load_ushort v{q+r}, v3, s[8:11], {sm} offen offset:{off}")
                A(f"buffer_load_ushort v{q+r+32}, v3, s[12:15], {sm} offen offset:{off}")
        e = 32 + jt * 2
        A(f"buffer_load_ushort v{e}, v5, s[8:11], {sm} offen")
        A(f"buffer_load_ushort v{e+32}, v5, s[12:15], {sm} offen")
        A(f"buffer_load_ushort v{e+1}, v5, s[8:11], {sd} offen offset:512")
        A(f"buffer_load_ushort v{e+33}, v5, s[12:15], {sd} offen offset:512")
    srd(A, 8, 16, SZ_WPK, WS_WPK)
    A("""
    s_lshl_b32 s24, s21, 15
    s_lshl_b32 s25, s22, 12
    s_add_u32 s24, s24, s25                   ; kappa*32768 + w2*4096
    s_mov_b32 s25, 0xffff0000
    s_brev_b32 s26, 1                         ; 0x80000000
    v_cmp_eq_u32 vcc, 0, v1
    """)
    for jt in range(2):
        A(f"s_waitcnt vmcnt({20 if jt == 0 else 2})")
        e = 32 + jt * 2
        for x in list(range(16 + jt * 8, 24 + jt * 8)) + [e, e + 1]:
            A(f"v_lshl_or_b32 v{x}, v{x+32}, 16, v{x}")
        for mt in range(2):
            q = 16 + (jt * 2 + mt) * 4
            A(f"v_xor_b32 v{q+2}, s26, v{q+2}")
            A(f"v_xor_b32 v{q+3}, s26, v{q+3}")
        q = 16 + jt * 8
        A(f"v_xor_b32 v{e}, s26, v{e}")
        for (x, y) in ((q, e), (q + 2, e + 1)):
            A(f"""
            v_lshlrev_b32 v40, 16, v{x}
            v_lshlrev_b32 v41, 16, v{y}
            v_and_b32 v42, s25, v{x}
            v_and_b32 v43, s25, v{y}
            v_add_f32 v40, v40, v41
            v_add_f32 v42, v42, v43
            v_mul_f32 v40, 0.5, v40
            v_mul_f32 v42, 0.5, v42
            v_cvt_pk_bf16_f32 v40, v40, v42
            v_cndmask_b32 v{x}, v{x}, v40, vcc
            """)
        for mt in range(2):
            q = 16 + (jt * 2 + mt) * 4
            A(f"buffer_store_dwordx4 {v(q,4)}, v4, s[8:11], s24 offen offset:{(jt*2+mt)*1024}")
    A("s_endpgm")
    A("L_k1_pf:")
    A(f"""
    s_cmp_ge_u32 s2, {K1_GRID}
    s_cbranch_scc1 L_k1_end
    s_getpc_b64 s[4:5]
    L_k1_pc:
    s_add_u32 s4, s4, {pf_start_label}-L_k1_pc
    s_addc_u32 s5, s5, 0
    v_lshlrev_b32 v1, 4, v0
    """)
    n = (pf_bytes + 4095) // 4096
    for i in range(n):
        A(f"global_load_dwordx4 v[4:7], v1, s[4:5]")
        if i + 1 < n:
            A("v_add_u32 v1, 0x1000, v1")
    A("s_waitcnt vmcnt(0)")
    A("L_k1_end:")
    A("s_endpgm")
    return descriptor(name, 208, 40, 208)
```

```python
WS_MOD  = 0x0
WS_CSB  = 0x4000
WS_FLG  = 0x10000
WS_ABUF = 0x20000
WS_WPK  = 0x220000
WS_CBUF = 0x440000
WS_WG1  = 0x660000
WS_X1   = 0x920000
WS_WD   = 0xB20000
WS_HM   = 0xCA0000
WS_END  = 0x1220000
SZ_MOD = 0x3000
SZ_CSB = 88 * 256
SZ_FLG = 8192
SZ_ABUF = 32 * 32 * 2048
SZ_WPK = 65 * 32768
SZ_CBUF = 16 * 65 * 2048
SZ_WG1 = 88 * 32768
SZ_X1 = 2 << 20
SZ_WD = 8 * 44 * 4096
SZ_HM = 32 * 88 * 2048
_l = [(WS_MOD, SZ_MOD), (WS_CSB, SZ_CSB), (WS_ABUF, SZ_ABUF), (WS_WPK, SZ_WPK), (WS_CBUF, SZ_CBUF), (WS_WG1, SZ_WG1),
      (WS_X1, SZ_X1), (WS_WD, SZ_WD), (WS_HM, SZ_HM), (WS_END, 0)]
for (a_, n_), (b_, _) in zip(_l, _l[1:]):
    assert a_ + n_ <= b_, (hex(a_), hex(n_), hex(b_))
KA_X, KA_WR, KA_WI, KA_BX, KA_WG, KA_WU, KA_WDN, KA_C, KA_WMOD, KA_OUT, KA_DBG, KA_WS = [8 * i for i in range(12)]
```

```python
import re, struct

def f32bits(x):
    return struct.unpack('<I', struct.pack('<f', x))[0]
def fl(x):
    return "0x%08x" % f32bits(x)

REG_RE = re.compile(r'\b([vas])(\d+)\b|\b([vas])\[(\d+):(\d+)\]|\b(vcc|exec|m0|scc)\b')

def regs_of(op):
    out = []
    for m in REG_RE.finditer(op):
        if m.group(1):
            out.append((m.group(1), int(m.group(2))))
        elif m.group(3):
            out += [(m.group(3), i) for i in range(int(m.group(4)), int(m.group(5)) + 1)]
        else:
            out.append((m.group(6), 0))
    return out

def split_ops(s):
    ops, depth, cur = [], 0, ''
    for ch in s:
        if ch == '[': depth += 1
        if ch == ']': depth -= 1
        if ch == ',' and depth == 0:
            ops.append(cur.strip()); cur = ''
        else:
            cur += ch
    if cur.strip(): ops.append(cur.strip())
    return ops

TRANS = ('v_exp_f32', 'v_log_f32', 'v_rcp_f32', 'v_rsq_f32', 'v_sqrt_f32', 'v_sin_f32', 'v_cos_f32', 'v_rcp_iflag_f32')

class Ins:
    def __init__(self, text):
        self.text = text
        t = text.split(';')[0].strip()
        self.label = t.endswith(':') or t.startswith('.') or t == ''
        self.kind = None
        self.w, self.r = [], []
        self.states = 1
        if self.label:
            self.states = 0
            return
        parts = t.split(None, 1)
        op = parts[0]; rest = parts[1] if len(parts) > 1 else ''
        self.op = op
        ops = split_ops(rest)
        if ops:
            last = ops[-1].split()
            self.mods = ' '.join(last[1:])
            ops[-1] = last[0] if last else ''
        else:
            self.mods = ''
        self.ops = ops
        R = [regs_of(o) for o in ops]
        if op == 's_nop':
            self.kind = 'nop'; self.states = int(ops[0], 0) + 1
        elif op.startswith('v_mfma'):
            self.kind = 'mfma'
            self.D, self.A, self.B, self.C = R[0], R[1], R[2], R[3]
            self.w = R[0]; self.r = R[1] + R[2] + R[3]
            self.passes = 8 if '32x32' in op else 4
        elif op.startswith('v_'):
            self.kind = 'valu'
            self.trans = op.replace('_e32', '').replace('_e64', '') in TRANS
            self.dpp = ('dpp' in op) or ('quad_perm' in self.mods) or ('row_' in self.mods)
            self.dot = op.startswith('v_dot')
            self.perml = op.startswith('v_permlane')
            self.rdl = op.startswith('v_readlane') or op.startswith('v_readfirstlane')
            if self.perml or op.startswith('v_swap'):
                self.w = R[0] + R[1]; self.r = R[0] + R[1]
            elif op.startswith(('v_add_co', 'v_sub_co', 'v_subrev_co', 'v_addc_co', 'v_subb_co', 'v_mad_u64', 'v_div_scale')):
                self.w = R[0] + R[1]; self.r = sum(R[2:], [])
            else:
                self.w = R[0]; self.r = sum(R[1:], [])
                if op.startswith(('v_fmac', 'v_dot2c', 'v_pk_fmac', 'v_writelane')) or self.dpp:
                    self.r = self.r + R[0]
                if op.startswith('v_cndmask') and len(ops) == 3:
                    self.r.append(('vcc', 0))
        elif op.startswith(('buffer_', 'global_', 'flat_')):
            self.kind = 'vmem'
            self.lds = ' lds' in (' ' + self.mods)
            isstore = 'store' in op or ('atomic' in op)
            self.wide = isstore and (op.endswith('x4') or op.endswith('x3'))
            if isstore or self.lds:
                self.r = sum(R, [])
                self.data = R[0] if op.startswith('buffer_') else R[1]
                if self.lds: self.r.append(('m0', 0))
                if 'atomic' in op and 'sc0' in self.mods:
                    self.w = R[0]
            else:
                self.w = R[0]; self.r = sum(R[1:], [])
                if 'd16' in op: self.r = self.r + R[0]
        elif op.startswith('ds_'):
            self.kind = 'ds'
            if op.startswith(('ds_read', 'ds_bpermute', 'ds_permute', 'ds_swizzle')) or '_rtn' in op:
                self.w = R[0]; self.r = sum(R[1:], [])
            else:
                self.r = sum(R, [])
        elif op.startswith('s_'):
            self.kind = 'salu'
            if op.startswith(('s_cmp', 's_cbranch', 's_branch', 's_waitcnt', 's_barrier', 's_endpgm', 's_setprio', 's_sleep', 's_bitcmp')):
                self.r = sum(R, [])
            else:
                self.w = R[0] if R else []; self.r = sum(R[1:], [])
                if 'saveexec' in op: self.w = self.w + [('exec', 0)]
        else:
            raise ValueError("unknown instr: " + text)

def ov(a, b):
    return bool(set(a) & set(b))

def need(p, c):
    n = 0
    isS = lambda regs: [x for x in regs if x[0] in ('s', 'vcc')]
    isV = lambda regs: [x for x in regs if x[0] in ('v', 'a')]
    if p.kind == 'valu':
        pw = isV(p.w); ps = isS(p.w)
        if c.kind == 'mfma' and ov(pw, c.r): n = max(n, 2)
        if c.kind == 'valu':
            if p.trans and not c.trans and ov(pw, c.r): n = max(n, 1)
            if p.trans and c.trans and ov(pw, c.r): n = max(n, 1)
            if c.dpp and ov(pw, c.r): n = max(n, 2)
            if c.rdl and ov(pw, c.r): n = max(n, 1)
            if c.perml and ov(pw, c.r): n = max(n, 2)
            if ov(ps, c.r): n = max(n, 4 if c.rdl or c.op.startswith('v_writelane') else 2)
            if p.dot:
                same = c.op == p.op
                if same:
                    srcab = [x for x in c.r if x not in c.w] if c.op.startswith('v_dot2c') else regs_of(c.ops[1]) + regs_of(c.ops[2])
                    if ov(pw, srcab): n = max(n, 3)
                elif ov(pw, c.r + c.w): n = max(n, 3)
            if ('sdwa' in p.op or 'op_sel' in p.mods and not p.op.startswith('v_pk')) and ov(pw, c.r + c.w): n = max(n, 1)
        if p.dot and c.kind in ('vmem', 'ds', 'mfma') and ov(pw, c.r + c.w): n = max(n, 3)
        if p.trans and c.kind in ('vmem', 'ds') and ov(pw, c.r): n = max(n, 1)
        if c.kind == 'vmem' and ov(ps, c.r): n = max(n, 5)
        if c.kind == 'salu' and ov(ps, c.r): n = max(n, 3)
        if ('exec', 0) in p.w: n = max(n, 5)
    elif p.kind == 'mfma':
        big = {4: 8, 8: 12}[p.passes]; part = {4: 6, 8: 10}[p.passes]; war = {4: 3, 8: 7}[p.passes]
        if c.kind == 'mfma':
            if ov(p.D, c.A + c.B): n = max(n, big)
            if ov(p.D, c.C) and not (p.D == c.C and p.passes == c.passes): n = max(n, part)
            if ov(p.D, c.D) and p.D != c.D: n = max(n, part)
        elif c.kind in ('valu', 'vmem', 'ds'):
            if ov(p.D, c.r + c.w): n = max(n, big)
            if c.kind == 'valu' and ov(p.C, c.w): n = max(n, war)
            if c.kind in ('vmem', 'ds') and ov(p.C, c.w): n = max(n, war)
    elif p.kind == 'vmem':
        if getattr(p, 'wide', False) and ov(p.data, c.w):
            n = max(n, 2)
    elif p.kind == 'ds':
        if p.op in ('ds_write_b128', 'ds_write_b96') and c.kind == 'valu' and ov(p.r, c.w):
            n = max(n, 1)
    elif p.kind == 'salu':
        if ('m0', 0) in p.w and ('m0', 0) in c.r: n = max(n, 1)
    return n

def pad(lines):
    out = []
    hist = []
    pos = 0
    for t in lines:
        ins = Ins(t)
        if ins.label:
            out.append(t); continue
        req = 0
        for (p, pp) in hist:
            gap = pos - pp
            req = max(req, need(p, ins) - gap)
        while req > 0:
            k = min(req, 16)
            out.append("    s_nop %d" % (k - 1)); pos += k; req -= k
        out.append(t)
        pos += ins.states
        hist.append((ins, pos))
        hist = [(p, pp) for (p, pp) in hist if pos - pp < 20]
    return out

class Asm:
    def __init__(self):
        self.lines = []
    def __call__(self, s):
        for l in s.strip('\n').split('\n'):
            l = l.strip()
            if not l: continue
            if l.endswith(':') or l.startswith('.'):
                self.lines.append(l)
            else:
                self.lines.append('    ' + l)
    def comment(self, s):
        self.lines.append('    ; ' + s)
    def text(self):
        return '\n'.join(pad_keep_comments(resolve_waits(self.lines))) + '\n'
    def ext(self, lst):
        for l in lst: self(l)

def pad_keep_comments(lines):
    return pad(lines)

def v(i, n=1):
    return "v%d" % i if n == 1 else "v[%d:%d]" % (i, i + n - 1)
def a(i, n=1):
    return "a%d" % i if n == 1 else "a[%d:%d]" % (i, i + n - 1)
def s(i, n=1):
    return "s%d" % i if n == 1 else "s[%d:%d]" % (i, i + n - 1)

def srd(A, d, base, nbytes, off=0):
    if off:
        A(f"s_add_u32 s{d}, s{base}, {off}")
        A(f"s_addc_u32 s{d+1}, s{base+1}, 0")
    else:
        A(f"s_mov_b32 s{d}, s{base}")
        A(f"s_mov_b32 s{d+1}, s{base+1}")
    A(f"s_mov_b32 s{d+2}, {nbytes}")
    A(f"s_mov_b32 s{d+3}, 0x00020000")

def kernel_header(A, name):
    A(f".globl {name}")
    A(".p2align 8")
    A(f".type {name},@function")
    A(f"{name}:")

def descriptor(name, vgpr, sgpr, accum):
    return f""".amdhsa_kernel {name}
  .amdhsa_next_free_vgpr {vgpr}
  .amdhsa_next_free_sgpr {sgpr}
  .amdhsa_accum_offset {accum}
  .amdhsa_group_segment_fixed_size 0
  .amdhsa_kernarg_size 96
  .amdhsa_user_sgpr_count 2
  .amdhsa_user_sgpr_kernarg_segment_ptr 1
  .amdhsa_system_sgpr_workgroup_id_x 1
.end_amdhsa_kernel
"""

import os
DIAG = os.environ.get('DIAG', '')
WS_DIAG = 0x4000000
def stamp(A, kern, idx):
    if kern in DIAG.split(','):
        A(f"s_memtime s[{60+2*idx}:{61+2*idx}]")
def dump_stamps(A, kern, n, ws_pair, nwaves, vt=250):
    if kern not in DIAG.split(','):
        return
    A("s_waitcnt lgkmcnt(0) vmcnt(0)")
    A(f"s_memtime s[{60+2*n}:{61+2*n}]")
    srd(A, 56, ws_pair, 1 << 20, WS_DIAG)
    A(f"v_lshrrev_b32 v{vt}, 6, v0")
    A(f"s_mul_i32 s55, s2, {nwaves}")
    A(f"v_add_u32 v{vt}, s55, v{vt}")
    A(f"v_lshlrev_b32 v{vt}, 6, v{vt}")
    A("s_waitcnt lgkmcnt(0)")
    for k in range(n + 1):
        A(f"v_mov_b32 v{vt+1}, s{60+2*k}")
        A(f"buffer_store_dword v{vt+1}, v{vt}, s[56:59], 0 offen offset:{4*k}")


def resolve_waits(lines):
    out = []
    VQ, LQ = [], []
    saved = {}
    waited = set()
    for l in lines:
        t = l.strip()
        if t.startswith(';@'):
            p = t[2:].split()
            if p[0] == 'save': saved[p[1]] = (list(VQ), list(LQ))
            elif p[0] == 'restore': VQ, LQ = list(saved[p[1]][0]), list(saved[p[1]][1]); waited = set()
            elif p[0] == 'reset': VQ, LQ = [], []
            elif p[0] in ('wv', 'wl'):
                Q = VQ if p[0] == 'wv' else LQ
                if p[0] == 'wv': waited.update(p[1:])
                idx = [i for i, x in enumerate(Q) if x in p[1:]]
                if idx:
                    n = len(Q) - 1 - max(idx)
                    lim = 63 if p[0] == 'wv' else 15
                    n = min(n, lim)
                    out.append(f"    s_waitcnt {'vmcnt' if p[0] == 'wv' else 'lgkmcnt'}({n})")
                    del Q[:len(Q) - n]
            else:
                raise ValueError(t)
            continue
        tag = None
        if ';@tag' in t:
            tag = t.split(';@tag')[1].split()[0]
            l = l.split(';@tag')[0].rstrip()
            t = l.strip()
        op = t.split()[0] if t and not t.startswith(';') else ''
        if op.startswith(('buffer_', 'global_')):
            if len(VQ) >= 63:
                out.append("    s_waitcnt vmcnt(62)")
                del VQ[:len(VQ) - 62]
            assert tag is None or tag not in waited, 'load issued after its wait: ' + t
            VQ.append(tag)
        elif op.startswith('ds_'):
            if len(LQ) >= 15:
                out.append("    s_waitcnt lgkmcnt(14)")
                del LQ[:len(LQ) - 14]
            LQ.append(tag)
        elif op == 's_waitcnt':
            m = re.search(r'vmcnt\((\d+)\)', t)
            if m and len(VQ) > int(m.group(1)): del VQ[:len(VQ) - int(m.group(1))]
            m = re.search(r'lgkmcnt\((\d+)\)', t)
            if m and len(LQ) > int(m.group(1)): del LQ[:len(LQ) - int(m.group(1))]
        elif op == 's_endpgm':
            VQ, LQ = [], []; waited = set()
        out.append(l)
    return out

def lines_of(s):
    return [l.strip() for l in s.strip('\n').split('\n') if l.strip()]

def interleave(main, fill, per=2, skip=0):
    out = []; fi = 0; nm = 0
    def take():
        nonlocal fi
        k = 0
        while fi < len(fill) and k < per:
            out.append(fill[fi])
            if not fill[fi].startswith(';@'): k += 1
            fi += 1
    for l in main:
        out.append(l)
        if l.startswith('v_mfma'):
            nm += 1
            if nm > skip: take()
    out += fill[fi:]
    return out

def spread(main, fill, every=None):
    real = [i for i, l in enumerate(main) if not l.startswith(';@')]
    n, k = len(real), len(fill)
    if k == 0: return list(main)
    pos = {}
    for j in range(k):
        at = real[min(n - 1, (j * n) // k)]
        pos.setdefault(at, []).append(fill[j])
    out = []
    for i, l in enumerate(main):
        out.append(l)
        for f in pos.get(i, []): out += f
    return out

def unpk(line):
    t = line.strip()
    m = re.match(r'v_pk_(mul|add|fma)_f32\s+(.*)', t)
    if not m: return [line]
    op = m.group(1)
    body = m.group(2)
    mods = dict((k, [int(x) for x in v_.split(',')]) for k, v_ in re.findall(r'(op_sel|op_sel_hi|neg_lo|neg_hi):\[([\d,]+)\]', body))
    body = re.sub(r'\s*(op_sel|op_sel_hi|neg_lo|neg_hi):\[[\d,]+\]', '', body)
    ops = split_ops(body)
    base = [int(re.match(r'v\[(\d+):', o).group(1)) for o in ops]
    n = len(ops) - 1
    sel = mods.get('op_sel', [0] * n); selh = mods.get('op_sel_hi', [1] * n)
    nl = mods.get('neg_lo', [0] * n); nh = mods.get('neg_hi', [0] * n)
    lo = [('-' if nl[i] else '') + f"v{base[i+1] + sel[i]}" for i in range(n)]
    hi = [('-' if nh[i] else '') + f"v{base[i+1] + selh[i]}" for i in range(n)]
    d = base[0]
    if any(x.lstrip('-') == f"v{d}" for x in hi):
        return [line]
    def one(dst, src):
        if op == 'fma' and src[2] == f"v{dst}" and not any(x.startswith('-') for x in src):
            return f"v_fmac_f32 v{dst}, {src[0]}, {src[1]}"
        return f"v_{op}_f32 v{dst}, " + ', '.join(src)
    return [one(d, lo), one(d + 1, hi)]
```

```python
from asmlib import *
from layout import *

K1_FFT = 128
K1_MOD = 96
K1_WPK = 128
K1_TP = 0
K1_PF = 8
K1_GRID = K1_FFT + K1_MOD + K1_WPK + K1_TP + K1_PF
K1_LDS = 4096 + 32 * 528

POSC = "" if os.environ.get('K3V', '7') != '4' else """
    v_and_b32 v20, 0x183, v17
    v_bfe_u32 v19, v17, 2, 1
    v_lshl_add_u32 v20, v19, 6, v20
    v_bfe_u32 v19, v17, 3, 4
    v_lshl_add_u32 v20, v19, 2, v20
    s_cmp_eq_u32 s23, 2
    s_cselect_b64 vcc, -1, 0
    v_cndmask_b32 v17, v17, v20, vcc
"""

def gen_k1(A, name, pf_start_label, pf_bytes):
    kernel_header(A, name)
    A(f"""
    s_getpc_b64 s[40:41]
    v_lshlrev_b32 v1, 5, v0
    global_load_dword v200, v1, s[40:41]
    s_cmp_ge_u32 s2, {K1_FFT}
    s_cbranch_scc1 L_k1_side
    s_load_dwordx2 s[4:5], s[0:1], {KA_X}
    s_load_dwordx2 s[6:7], s[0:1], {KA_WS}
    """)
    stamp(A, 'k1', 0)
    A("""
    s_and_b32 s20, s2, 31
    s_lshr_b32 s21, s2, 5
    v_and_b32 v1, 15, v0            ; m / n
    v_bfe_u32 v2, v0, 4, 2          ; g
    v_lshrrev_b32 v3, 6, v0         ; w
    v_lshlrev_b32 v4, 18, v2
    v_lshl_add_u32 v4, v3, 8, v4
    v_lshl_add_u32 v4, v1, 4, v4    ; g*256K + w*256 + m*16
    s_lshl_b32 s22, s20, 10
    s_waitcnt lgkmcnt(0)
    """)
    stamp(A, 'k1', 1)
    srd(A, 8, 4, 2097152)
    L = lambda kk, i: 16 + (kk * 8 + i) * 4
    def xload(q):
        A(f"""
        s_add_u32 s28, s21, {q}
        s_and_b32 s{30+q}, s28, 3
        s_lshr_b32 s29, s{30+q}, 1
        s_lshl_b32 s29, s29, 20
        s_and_b32 s28, s28, 1
        s_lshl_b32 s28, s28, 17
        s_add_u32 s28, s28, s29
        s_add_u32 s28, s28, s22
        """)
        for i in range(4):
            if i: A(f"s_add_u32 s28, s28, 32768")
            A(f"buffer_load_dwordx4 {v(16 + (q*4+i)*4, 4)}, v4, s[8:11], s28 offen")
    xload(0); xload(1)
    srd(A, 12, 6, SZ_ABUF, WS_ABUF)
    stamp(A, 'k1', 2)
    FC = lambda nt, c, kk: 128 + ((nt * 2 + c) * 2 + kk) * 4
    CS, SN = 160, 168
    A(f"""
    v_cvt_f32_u32 v5, v1
    v_mul_f32 v5, {fl(1/64)}, v5            ; n/64
    v_lshlrev_b32 v6, 3, v2
    v_cvt_f32_u32 v6, v6                     ; 8g
    v_mul_f32 v6, v5, v6                     ; n*8g/64
    """)
    for i in range(8):
        if i % 4 == 0:
            q = i // 4
            A(f"""
            s_lshr_b32 s28, s{30+q}, 1
            s_lshl_b32 s28, s28, 5
            s_and_b32 s29, s{30+q}, 1
            s_lshl_b32 s29, s29, 2
            s_add_u32 s28, s28, s29
            v_cvt_f32_u32 v7, s28
            v_fma_f32 v7, v7, v5, v6
            """)
        else:
            A(f"v_add_f32 v7, v7, v5")
        A(f"v_cos_f32 v{CS+i}, v7")
        A(f"v_sin_f32 v{SN+i}, v7")
    def term(kind, i):
        c_, s_ = f"v{CS+i}", f"v{SN+i}"
        return {'c': c_, '-c': '-' + c_, 's': s_, '-s': '-' + s_}[kind]
    tab = {(0, 0): ['c'] * 4, (0, 1): ['-s'] * 4,
           (1, 0): ['c', '-s', '-c', 's'], (1, 1): ['-s', '-c', 's', 'c']}
    for nt in range(2):
        for c in range(2):
            for d in range(4):
                i0, i1 = 2 * d, 2 * d + 1
                A(f"v_cvt_pk_bf16_f32 v{FC(nt,c,0)+d}, {term(tab[(nt,c)][i0%4], i0)}, {term(tab[(nt,c)][i1%4], i1)}")
    A("""
    v_cmp_eq_u32 vcc, 0, v1
    v_mov_b32 v8, 0xbf803f80
    v_and_b32 v9, 1, v1
    v_sub_u32 v9, 0, v9
    v_and_b32 v9, 0x80008000, v9
    """)
    for d in range(4):
        A(f"v_cndmask_b32 v{FC(0,1,0)+d}, v{FC(0,1,0)+d}, v8, vcc")
    for nt in range(2):
        for c in range(2):
            for d in range(4):
                A(f"v_xor_b32 v{FC(nt,c,1)+d}, v9, v{FC(nt,c,0)+d}")
    S0, Q0 = 80, 96
    for k in range(16):
        A(f"v_mov_b64 v[{S0+2*k}:{S0+2*k+1}], 0")
    A("s_mov_b32 s24, 0x3f803f80")
    A("s_mov_b32 s25, 0xffff0000")
    A("""
    v_bfe_u32 v10, v0, 3, 1                 ; b3 = stat
    v_bfe_u32 v11, v0, 2, 1                 ; b2 = kk
    v_lshlrev_b32 v10, 8, v10
    v_lshl_add_u32 v10, v3, 9, v10          ; w*512 + st*256
    v_lshl_add_u32 v10, v11, 7, v10         ; + kk*128
    v_lshl_add_u32 v10, v2, 5, v10
    v_and_b32 v11, 63, v0
    v_lshlrev_b32 v11, 2, v11
    v_lshl_add_u32 v12, v3, 9, v11
    v_lshlrev_b32 v13, 9, v3
    v_lshl_add_u32 v13, v2, 5, v13
    v_mul_u32_u24 v14, 528, v1
    v_lshl_add_u32 v15, v3, 2, v2
    v_lshl_add_u32 v14, v15, 4, v14
    v_bfe_u32 v112, v0, 5, 1
    v_lshl_add_u32 v112, v3, 3, v112        ; row (k = 0)
    v_and_b32 v113, 31, v0
    v_mul_u32_u24 v15, 528, v112
    v_lshl_add_u32 v15, v113, 4, v15
    v_lshlrev_b32 v112, 16, v112
    v_lshl_add_u32 v112, v113, 4, v112
    s_lshl_b32 s26, s20, 11
    s_lshl_b32 s27, s21, 9
    s_add_u32 s26, s26, s27                 ; s2*2048 + p*512
    s_add_u32 s27, s26, 0x100000
    """)
    xload(2); xload(3)
    stamp(A, 'k1', 3)
    for k in range(16):
        A(f"s_waitcnt vmcnt({15-k})")
        if k == 1: stamp(A, 'k1', 4)
        for j in range(4):
            A(f"v_dot2c_f32_bf16 v{S0+k}, s24, v{16+4*k+j}")
            A(f"v_dot2c_f32_bf16 v{Q0+k}, v{16+4*k+j}, v{16+4*k+j}")
    stamp(A, 'k1', 5)
    for k in range(16):
        A(f"v_add_f32_dpp v{S0+k}, v{S0+k}, v{S0+k} row_ror:8 row_mask:0xf bank_mask:0x3")
        A(f"v_add_f32_dpp v{S0+k}, v{Q0+k}, v{Q0+k} row_ror:8 row_mask:0xf bank_mask:0xc")
    for k in range(8):
        A(f"v_add_f32_dpp v{S0+k}, v{S0+k}, v{S0+k} row_shl:4 row_mask:0xf bank_mask:0x5")
        A(f"v_add_f32_dpp v{S0+k}, v{S0+8+k}, v{S0+8+k} row_shr:4 row_mask:0xf bank_mask:0xa")
    for k in range(8):
        A(f"v_add_f32_dpp v{S0+k}, v{S0+k}, v{S0+k} quad_perm:[1,0,3,2] row_mask:0xf bank_mask:0xf")
    for k in range(8):
        A(f"v_add_f32_dpp v{S0+k}, v{S0+k}, v{S0+k} quad_perm:[2,3,0,1] row_mask:0xf bank_mask:0xf")
    A(f"ds_write_b128 v10, v[{S0}:{S0+3}]")
    A(f"ds_write_b128 v10, v[{S0+4}:{S0+7}] offset:16")
    T = lambda e, k: 176 + e * 16 + k
    for p in range(4):
        if p < 3:
            A(f"s_cmp_lg_u32 s21, {p}")
            A(f"s_cbranch_scc1 L_k1_p{p+1}")
        for k in range(16):
            A(f"v_lshlrev_b32 v{T(0,k)}, 16, v{16+4*k+p}")
            A(f"v_and_b32 v{T(1,k)}, s25, v{16+4*k+p}")
        if p < 3:
            A("s_branch L_k1_pdone")
            A(f"L_k1_p{p+1}:")
    A("L_k1_pdone:")
    stamp(A, 'k1', 6)
    A("""
    s_waitcnt lgkmcnt(0)
    s_barrier
    ds_read2st64_b32 v[96:97], v11 offset0:0 offset1:1
    ds_read2st64_b32 v[98:99], v11 offset0:2 offset1:3
    ds_read2st64_b32 v[100:101], v11 offset0:4 offset1:5
    ds_read2st64_b32 v[102:103], v11 offset0:6 offset1:7
    s_waitcnt lgkmcnt(0)
    v_pk_add_f32 v[96:97], v[96:97], v[98:99]
    v_pk_add_f32 v[100:101], v[100:101], v[102:103]
    v_pk_add_f32 v[96:97], v[96:97], v[100:101]
    """)
    A(f"""
    v_mul_f32 v96, {fl(1/512)}, v96          ; mean
    v_mul_f32 v97, {fl(1/512)}, v97          ; E[x^2]
    v_fma_f32 v97, -v96, v96, v97
    v_max_f32 v97, 0, v97
    v_add_f32 v97, {fl(1e-5)}, v97
    v_rsq_f32 v97, v97
    v_mul_f32 v96, -1.0, v96
    v_mul_f32 v96, v96, v97                  ; -mean*rstd
    ds_write2st64_b32 v12, v97, v96 offset0:8 offset1:9
    s_waitcnt lgkmcnt(0)
    """)
    for kk in range(2):
        for h in range(2):
            A(f"ds_read_b128 v[{80+kk*8+h*4}:{80+kk*8+h*4+3}], v13 offset:{2048 + kk*128 + h*16}")
            A(f"ds_read_b128 v[{96+kk*8+h*4}:{96+kk*8+h*4+3}], v13 offset:{2048 + 256 + kk*128 + h*16}")
    stamp(A, 'k1', 7)
    DF = lambda e, kk: 16 + (e * 2 + kk) * 4
    ACC = lambda e, nt, c: 32 + ((e * 2 + nt) * 2 + c) * 4
    for kk in range(2):
        A(f"s_waitcnt lgkmcnt({4 if kk == 0 else 0})")
        for e in range(2):
            for d in range(4):
                k = kk * 8 + 2 * d
                A(f"v_pk_fma_f32 v[{T(e,k)}:{T(e,k)+1}], v[{T(e,k)}:{T(e,k)+1}], v[{80+k}:{81+k}], v[{96+k}:{97+k}]")
            for d in range(4):
                k = kk * 8 + 2 * d
                A(f"v_cvt_pk_bf16_f32 v{DF(e,kk)+d}, v{T(e,k)}, v{T(e,k)+1}")
        for e in range(2):
            for nt in range(2):
                for c in range(2):
                    cin = "0" if kk == 0 else v(ACC(e, nt, c), 4)
                    A(f"v_mfma_f32_16x16x32_bf16 {v(ACC(e,nt,c),4)}, {v(DF(e,kk),4)}, {v(FC(nt,c,kk),4)}, {cin}")
    for e in range(2):
        for nt in range(2):
            o = 64 + (e * 2 + nt) * 4
            for r in range(4):
                A(f"v_cvt_pk_bf16_f32 v{o+r}, v{ACC(e,nt,0)+r}, v{ACC(e,nt,1)+r}")
            A(f"ds_write_b128 v14, {v(o,4)} offset:{4096 + nt*16*528 + e*256}")
    A("s_waitcnt lgkmcnt(0)")
    A("s_barrier")
    for k in range(4):
        A(f"ds_read_b128 {v(64+4*k,4)}, v15 offset:{4096 + k*2*528}")
    for k in range(4):
        A(f"s_waitcnt lgkmcnt({3-k})")
        A(f"buffer_store_dwordx4 {v(64+4*k,4)}, v112, s[12:15], s26 offen")
        if k < 3: A("s_add_u32 s26, s26, 0x20000")
    stamp(A, 'k1', 8)
    dump_stamps(A, 'k1', 9, 6, 4, vt=2)
    A("s_endpgm")

    A("L_k1_side:")
    A(f"""
    s_cmp_ge_u32 s2, {K1_FFT + K1_MOD}
    s_cbranch_scc1 L_k1_pf
    s_load_dwordx4 s[4:7], s[0:1], {KA_C}     ; c, w_mod
    s_load_dwordx2 s[16:17], s[0:1], {KA_WS}
    s_sub_u32 s20, s2, {K1_FFT}
    s_and_b32 s21, s20, 7
    s_lshr_b32 s22, s20, 4
    s_lshl_b32 s22, s22, 3
    s_add_u32 s21, s21, s22
    s_lshl_b32 s21, s21, 1
    s_bfe_u32 s22, s20, 0x10003
    s_add_u32 s21, s21, s22                   ; cg 0..95
    v_and_b32 v1, 3, v0                       ; cq
    v_lshrrev_b32 v2, 2, v0                   ; rg 0..63
    v_mul_u32_u24 v3, 6144, v2
    v_lshl_add_u32 v3, v1, 4, v3
    v_lshlrev_b32 v4, 1, v2
    s_lshl_b32 s22, s21, 6
    s_waitcnt lgkmcnt(0)
    """)
    srd(A, 8, 6, 512 * 6144)
    srd(A, 12, 4, 1024)
    for j in range(8):
        A(f"buffer_load_ushort v{8+j}, v4, s[12:15], 0 offen offset:{j*128}")
    for j in range(8):
        A(f"s_add_u32 s23, s22, {j * 64 * 6144}")
        A(f"buffer_load_dwordx4 {v(16+4*j,4)}, v3, s[8:11], s23 offen")
    srd(A, 12, 16, SZ_MOD, WS_MOD)
    A("s_mov_b32 s25, 0xffff0000")
    A("s_waitcnt vmcnt(8)")
    for j in range(8):
        A(f"v_lshlrev_b32 v{8+j}, 16, v{8+j}")
        A(f"v_mul_f32 v{48+j}, {fl(-1.4426950408889634)}, v{8+j}")
        A(f"v_exp_f32 v{48+j}, v{48+j}")
    for j in range(8):
        A(f"v_add_f32 v{48+j}, 1.0, v{48+j}")
        A(f"v_rcp_f32 v{48+j}, v{48+j}")
    for j in range(8):
        A(f"v_mul_f32 v{8+j}, v{8+j}, v{48+j}")
        A(f"v_cvt_pk_bf16_f32 v{8+j}, v{8+j}, v{8+j}")
        A(f"v_and_b32 v{8+j}, s25, v{8+j}")
    for j in range(8):
        A(f"s_waitcnt vmcnt({7-j})")
        for q in range(4):
            A(f"v_lshlrev_b32 v56, 16, v{16+4*j+q}")
            A(f"v_and_b32 v57, s25, v{16+4*j+q}")
            if j == 0:
                A(f"v_mul_f32 v{48+2*q}, v56, v{8+j}")
                A(f"v_mul_f32 v{49+2*q}, v57, v{8+j}")
            else:
                A(f"v_fmac_f32 v{48+2*q}, v56, v{8+j}")
                A(f"v_fmac_f32 v{49+2*q}, v57, v{8+j}")
    for rot in (4, 8):
        for q in range(8):
            A(f"v_add_f32_dpp v{48+q}, v{48+q}, v{48+q} row_ror:{rot} row_mask:0xf bank_mask:0xf")
    A("""
    v_lshrrev_b32 v5, 4, v0
    v_lshlrev_b32 v5, 7, v5
    v_lshl_add_u32 v5, v1, 5, v5
    ds_write_b128 v5, v[48:51]
    ds_write_b128 v5, v[52:55] offset:16
    v_lshlrev_b32 v6, 2, v0
    s_waitcnt lgkmcnt(0)
    s_barrier
    v_cmp_gt_u32 vcc, 32, v0
    s_and_saveexec_b64 s[26:27], vcc
    s_cbranch_execz L_k1_end
    """)
    for k in range(8):
        A(f"ds_read2_b32 v[{16+2*k}:{17+2*k}], v6 offset0:{64*k} offset1:{64*k+32}") if 64*k+32 < 256 else \
            A(f"ds_read2_b32 v[{16+2*k}:{17+2*k}], v7 offset0:{64*(k-4)} offset1:{64*(k-4)+32}")
        if k == 0:
            A("v_add_u32 v7, 1024, v6")
    A("s_waitcnt lgkmcnt(0)")
    for k in (4, 2, 1):
        for q in range(k):
            A(f"v_pk_add_f32 v[{16+2*q}:{17+2*q}], v[{16+2*q}:{17+2*q}], v[{16+2*(q+k)}:{17+2*(q+k)}]")
    A(f"""
    v_add_f32 v16, v16, v17
    v_cvt_pk_bf16_f32 v16, v16, v16
    v_and_b32 v16, s25, v16
    s_lshr_b32 s23, s21, 4
    s_cmp_eq_u32 s23, 1
    s_cselect_b32 s24, 1.0, 0
    s_cmp_eq_u32 s23, 4
    s_cselect_b32 s24, 1.0, s24
    v_add_f32 v16, s24, v16
    v_cvt_pk_bf16_f32 v16, v16, v16
    v_and_b32 v16, s25, v16
    s_and_b32 s22, s21, 15
    s_lshl_b32 s22, s22, 5
    v_add_u32 v17, s22, v0                    ; d
    v_and_b32 v18, 7, v17
    v_lshlrev_b32 v18, 6, v18
    v_lshrrev_b32 v19, 7, v17
    v_lshl_add_u32 v18, v19, 4, v18
    v_bfe_u32 v19, v17, 3, 2
    v_lshl_add_u32 v18, v19, 2, v18
    v_bfe_u32 v20, v17, 5, 2
    v_add_u32 v18, v18, v20                   ; posA
    s_cmp_lt_u32 s23, 2
    s_cselect_b64 vcc, -1, 0
    v_cndmask_b32 v17, v17, v18, vcc
    {POSC}
    v_lshlrev_b32 v17, 2, v17
    s_lshl_b32 s22, s23, 11                   ; chunk*2048
    buffer_store_dword v16, v17, s[12:15], s22 offen
    s_endpgm
    """)
    A("L_k1_wpk:")
    A(f"""
    s_cmp_ge_u32 s2, {K1_GRID}
    s_cbranch_scc1 L_k1_end
    s_load_dwordx4 s[4:7], s[0:1], {KA_WR}    ; w_r, w_i
    s_sub_u32 s20, s2, {K1_FFT + K1_MOD + K1_PF}
    s_and_b32 s21, s20, 31                    ; p
    s_lshr_b32 s22, s20, 5                    ; cls
    s_sub_u32 s23, 0, s21
    s_bitcmp1_b32 s22, 0
    s_cselect_b32 s23, s23, s21               ; +-p
    s_add_u32 s24, s22, 1
    s_lshr_b32 s24, s24, 1
    s_lshl_b32 s24, s24, 6
    s_add_u32 s23, s23, s24                   ; residue
    s_cmp_eq_u32 s20, 64
    s_cselect_b32 s23, 32, s23
    s_cmp_eq_u32 s20, 96
    s_cselect_b32 s23, 96, s23
    s_mul_i32 s23, s23, 514
    v_lshrrev_b32 v1, 4, v0                   ; j = 0..15
    v_and_b32 v2, 15, v0
    v_mul_u32_u24 v1, {128*514}, v1
    v_min_u32 v2, 8, v2
    v_lshl_add_u32 v1, v2, 6, v1
    s_waitcnt lgkmcnt(0)
    """)
    WSZ = 2048 * 514
    srd(A, 8, 4, WSZ)
    srd(A, 12, 6, WSZ)
    A("""
    buffer_load_ushort v4, v1, s[8:11], s23 offen
    buffer_load_ushort v5, v1, s[12:15], s23 offen
    s_waitcnt vmcnt(0)
    s_endpgm
    """)
    A("L_k1_pf:")
    A(f"""
    s_cmp_ge_u32 s2, {K1_FFT + K1_MOD + K1_PF}
    s_cbranch_scc1 L_k1_wpk
    s_getpc_b64 s[4:5]
    L_k1_pc:
    s_add_u32 s4, s4, {pf_start_label}-L_k1_pc
    s_addc_u32 s5, s5, 0
    v_lshlrev_b32 v1, 4, v0
    """)
    n = (pf_bytes + 4095) // 4096
    for i in range(n):
        A(f"global_load_dwordx4 v[4:7], v1, s[4:5]")
        if i + 1 < n:
            A("v_add_u32 v1, 0x1000, v1")
    A("s_waitcnt vmcnt(0)")
    A("L_k1_end:")
    A("s_endpgm")
    return descriptor(name, 208, 100, 208)
```

```python
import sys, os
from asmlib import *
from layout import *
import k1
HDR = open('adaLN_cond__spectral_gfnet__glu_gated_bilinear__prompt.s.ref').read().split('; Override launch')[0]

def build(which=('k1',)):
    A = Asm()
    launches = []
    descs = []
    A('.amdgcn_target "amdgcn-amd-amdhsa--gfx950"')
    A('.text')
    later = [k for k in which if k != 'k1']
    import importlib
    mods = {k: importlib.import_module(k + ('_v4' if k == 'k3' and os.environ.get('K3V') == '4' else '')) for k in which}
    descs.append(k1.gen_k1(A, 'k1_kernel', 'L_code_k2', PF_BYTES))
    launches.append(f"; @launch kernel=k1_kernel grid=({k1.K1_GRID},1,1) block=(256,1,1) lds={k1.K1_LDS}")
    A('.p2align 8')
    A('L_code_k2:')
    for k in later:
        m = mods[k]
        descs.append(m.gen(A, k + '_kernel'))
        launches.append(f"; @launch kernel={k}_kernel grid=({m.GRID},1,1) block=({m.BLOCK},1,1) lds={m.LDS}")
    if os.environ.get('SC1', '1') == '1':
        cur = None; new = []
        for l in A.lines:
            t = l.strip()
            if t.endswith('_kernel:'): cur = t
            if (cur != 'k4_kernel:' or os.environ.get('SC1K4', '1') == '1') and t.startswith('buffer_store') and 's[56:59]' not in t:
                l = (l.split(';@tag')[0].rstrip() + ' sc1' + (' ;@tag' + l.split(';@tag')[1] if ';@tag' in l else ''))
            new.append(l)
        A.lines = new
    if DIAG == 'rt':
        new = []; kidx = -1
        for l in A.lines:
            t = l.strip()
            if t.endswith('_kernel:'):
                kidx += 1
                new.append(l)
                new.append('    s_memrealtime s[96:97]')
                new.append('    s_memtime s[92:93]')
                continue
            if t == 's_endpgm':
                new += ['    ' + x for x in lines_of(f'''
                s_mov_b64 exec, -1
                s_waitcnt vmcnt(0) lgkmcnt(0)
                s_memrealtime s[98:99]
                s_memtime s[94:95]
                s_load_dwordx2 s[90:91], s[0:1], {KA_WS}
                s_waitcnt lgkmcnt(0)
                s_add_u32 s84, s90, {WS_DIAG + kidx * 65536}
                s_addc_u32 s85, s91, 0
                s_mov_b32 s86, 65536
                s_mov_b32 s87, 0x00020000
                s_lshl_b32 s88, s2, 4
                v_mov_b32 v0, s96
                v_mov_b32 v1, s98
                v_mov_b32 v2, s92
                v_mov_b32 v3, s94
                v_mov_b32 v4, 0
                buffer_store_dwordx4 v[0:3], v4, s[84:87], s88 offen
                s_endpgm''')]
                continue
            new.append(l)
        A.lines = new
        descs = [d.replace('next_free_sgpr 40', 'next_free_sgpr 100') for d in descs]
    if DIAG == 'hd':
        new = []; kidx = -1
        for l in A.lines:
            t = l.strip()
            if t.endswith('_kernel:'):
                kidx += 1
                new.append(l)
                new.append('    s_memrealtime s[96:97]')
                continue
            if t == 's_endpgm':
                new += ['    ' + x for x in lines_of(f'''
                s_mov_b64 exec, 1
                s_waitcnt vmcnt(0) lgkmcnt(0)
                s_memrealtime s[98:99]
                s_load_dwordx2 s[90:91], s[0:1], {KA_DBG}
                s_waitcnt lgkmcnt(0)
                s_sub_u32 s84, s90, {kidx * 512}
                s_subb_u32 s85, s91, 0
                s_mov_b32 s86, 256
                s_mov_b32 s87, 0x00020000
                s_not_b32 s96, s96
                v_mov_b32 v0, s96
                v_mov_b32 v1, s98
                v_mov_b32 v4, 0
                buffer_atomic_umax v0, v4, s[84:87], 0 offen offset:{kidx * 8}
                buffer_atomic_umax v1, v4, s[84:87], 0 offen offset:{kidx * 8 + 4}
                s_endpgm''')]
                continue
            new.append(l)
        A.lines = new
    A('L_code_end:')
    A('s_endpgm')
    A('.fill 1024, 4, 0xbf800000')
    txt = HDR + '\n'.join(launches) + '\n' + A.text() + '.section .rodata,"a"\n' + ''.join('.p2align 6\n' + d for d in descs)
    return txt

PF_BYTES = 4096
if __name__ == '__main__':
    import subprocess, re
    which = sys.argv[2].split(',') if len(sys.argv) > 2 else ['k1']
    out = sys.argv[1]
    for it in range(2):
        txt = build(which)
        open('build_tmp.s', 'w').write(txt)
        r = subprocess.run(['clang', '-x', 'assembler', '-target', 'amdgcn-amd-amdhsa', '-mcpu=gfx950', '-c', 'build_tmp.s', '-o', 'build_tmp.o'], capture_output=True, text=True)
        if r.returncode:
            print(r.stderr[:3000]); sys.exit(1)
        sy = subprocess.run(['llvm-objdump', '-t', 'build_tmp.o'], capture_output=True, text=True).stdout
        d = {l.split()[-1]: int(l.split()[0], 16) for l in sy.splitlines() if ' .text' in l}
        PF_BYTES = max(d['L_code_end'] - d['L_code_k2'], 4)
    open(out, 'w').write(txt)
    names = sorted([(a_, n) for n, a_ in d.items() if n.endswith('_kernel') or n == 'L_code_end'])
    print("code sizes:", [(n, names[i+1][0] - a_) for i, (a_, n) in enumerate(names[:-1])], "file bytes", len(txt))
```

```python
import re, struct

def f32bits(x):
    return struct.unpack('<I', struct.pack('<f', x))[0]
def fl(x):
    return "0x%08x" % f32bits(x)

REG_RE = re.compile(r'\b([vas])(\d+)\b|\b([vas])\[(\d+):(\d+)\]|\b(vcc|exec|m0|scc)\b')

def regs_of(op):
    out = []
    for m in REG_RE.finditer(op):
        if m.group(1):
            out.append((m.group(1), int(m.group(2))))
        elif m.group(3):
            out += [(m.group(3), i) for i in range(int(m.group(4)), int(m.group(5)) + 1)]
        else:
            out.append((m.group(6), 0))
    return out

def split_ops(s):
    ops, depth, cur = [], 0, ''
    for ch in s:
        if ch == '[': depth += 1
        if ch == ']': depth -= 1
        if ch == ',' and depth == 0:
            ops.append(cur.strip()); cur = ''
        else:
            cur += ch
    if cur.strip(): ops.append(cur.strip())
    return ops

TRANS = ('v_exp_f32', 'v_log_f32', 'v_rcp_f32', 'v_rsq_f32', 'v_sqrt_f32', 'v_sin_f32', 'v_cos_f32', 'v_rcp_iflag_f32')

class Ins:
    def __init__(self, text):
        self.text = text
        t = text.split(';')[0].strip()
        self.label = t.endswith(':') or t.startswith('.') or t == ''
        self.kind = None
        self.w, self.r = [], []
        self.states = 1
        if self.label:
            self.states = 0
            return
        parts = t.split(None, 1)
        op = parts[0]; rest = parts[1] if len(parts) > 1 else ''
        self.op = op
        ops = split_ops(rest)
        if ops:
            last = ops[-1].split()
            self.mods = ' '.join(last[1:])
            ops[-1] = last[0] if last else ''
        else:
            self.mods = ''
        self.ops = ops
        R = [regs_of(o) for o in ops]
        if op == 's_nop':
            self.kind = 'nop'; self.states = int(ops[0], 0) + 1
        elif op.startswith('v_mfma'):
            self.kind = 'mfma'
            self.D, self.A, self.B, self.C = R[0], R[1], R[2], R[3]
            self.w = R[0]; self.r = R[1] + R[2] + R[3]
            self.passes = 8 if '32x32' in op else 4
        elif op.startswith('v_'):
            self.kind = 'valu'
            self.trans = op.replace('_e32', '').replace('_e64', '') in TRANS
            self.dpp = ('dpp' in op) or ('quad_perm' in self.mods) or ('row_' in self.mods)
            self.dot = op.startswith('v_dot')
            self.perml = op.startswith('v_permlane')
            self.rdl = op.startswith('v_readlane') or op.startswith('v_readfirstlane')
            if self.perml or op.startswith('v_swap'):
                self.w = R[0] + R[1]; self.r = R[0] + R[1]
            elif op.startswith(('v_add_co', 'v_sub_co', 'v_subrev_co', 'v_addc_co', 'v_subb_co', 'v_mad_u64', 'v_div_scale')):
                self.w = R[0] + R[1]; self.r = sum(R[2:], [])
            else:
                self.w = R[0]; self.r = sum(R[1:], [])
                if op.startswith(('v_fmac', 'v_dot2c', 'v_pk_fmac', 'v_writelane')) or self.dpp:
                    self.r = self.r + R[0]
                if op.startswith('v_cndmask') and len(ops) == 3:
                    self.r.append(('vcc', 0))
        elif op.startswith(('buffer_', 'global_', 'flat_')):
            self.kind = 'vmem'
            self.lds = ' lds' in (' ' + self.mods)
            isstore = 'store' in op or ('atomic' in op)
            self.wide = isstore and (op.endswith('x4') or op.endswith('x3'))
            if isstore or self.lds:
                self.r = sum(R, [])
                self.data = R[0] if op.startswith('buffer_') else R[1]
                if self.lds: self.r.append(('m0', 0))
                if 'atomic' in op and 'sc0' in self.mods:
                    self.w = R[0]
            else:
                self.w = R[0]; self.r = sum(R[1:], [])
                if 'd16' in op: self.r = self.r + R[0]
        elif op.startswith('ds_'):
            self.kind = 'ds'
            if op.startswith(('ds_read', 'ds_bpermute', 'ds_permute', 'ds_swizzle')) or '_rtn' in op:
                self.w = R[0]; self.r = sum(R[1:], [])
            else:
                self.r = sum(R, [])
        elif op.startswith('s_'):
            self.kind = 'salu'
            if op.startswith(('s_cmp', 's_cbranch', 's_branch', 's_waitcnt', 's_barrier', 's_endpgm', 's_setprio', 's_sleep', 's_bitcmp')):
                self.r = sum(R, [])
            else:
                self.w = R[0] if R else []; self.r = sum(R[1:], [])
                if 'saveexec' in op: self.w = self.w + [('exec', 0)]
        else:
            raise ValueError("unknown instr: " + text)

def ov(a, b):
    return bool(set(a) & set(b))

def need(p, c):
    n = 0
    isS = lambda regs: [x for x in regs if x[0] in ('s', 'vcc')]
    isV = lambda regs: [x for x in regs if x[0] in ('v', 'a')]
    if p.kind == 'valu':
        pw = isV(p.w); ps = isS(p.w)
        if c.kind == 'mfma' and ov(pw, c.r): n = max(n, 2)
        if c.kind == 'valu':
            if p.trans and not c.trans and ov(pw, c.r): n = max(n, 1)
            if p.trans and c.trans and ov(pw, c.r): n = max(n, 1)
            if c.dpp and ov(pw, c.r): n = max(n, 2)
            if c.rdl and ov(pw, c.r): n = max(n, 1)
            if c.perml and ov(pw, c.r): n = max(n, 2)
            if ov(ps, c.r): n = max(n, 4 if c.rdl or c.op.startswith('v_writelane') else 2)
            if p.dot:
                same = c.op == p.op
                if same:
                    srcab = [x for x in c.r if x not in c.w] if c.op.startswith('v_dot2c') else regs_of(c.ops[1]) + regs_of(c.ops[2])
                    if ov(pw, srcab): n = max(n, 3)
                elif ov(pw, c.r + c.w): n = max(n, 3)
            if ('sdwa' in p.op or 'op_sel' in p.mods and not p.op.startswith('v_pk')) and ov(pw, c.r + c.w): n = max(n, 1)
        if p.dot and c.kind in ('vmem', 'ds', 'mfma') and ov(pw, c.r + c.w): n = max(n, 3)
        if p.trans and c.kind in ('vmem', 'ds') and ov(pw, c.r): n = max(n, 1)
        if c.kind == 'vmem' and ov(ps, c.r): n = max(n, 5)
        if c.kind == 'salu' and ov(ps, c.r): n = max(n, 3)
        if ('exec', 0) in p.w: n = max(n, 5)
    elif p.kind == 'mfma':
        big = {4: 8, 8: 12}[p.passes]; part = {4: 6, 8: 10}[p.passes]; war = {4: 3, 8: 7}[p.passes]
        if c.kind == 'mfma':
            if ov(p.D, c.A + c.B): n = max(n, big)
            if ov(p.D, c.C) and not (p.D == c.C and p.passes == c.passes): n = max(n, part)
            if ov(p.D, c.D) and p.D != c.D: n = max(n, part)
        elif c.kind in ('valu', 'vmem', 'ds'):
            if ov(p.D, c.r + c.w): n = max(n, big)
            if c.kind == 'valu' and ov(p.C, c.w): n = max(n, war)
            if c.kind in ('vmem', 'ds') and ov(p.C, c.w): n = max(n, war)
    elif p.kind == 'vmem':
        if getattr(p, 'wide', False) and ov(p.data, c.w):
            n = max(n, 2)
    elif p.kind == 'ds':
        if p.op in ('ds_write_b128', 'ds_write_b96') and c.kind == 'valu' and ov(p.r, c.w):
            n = max(n, 1)
    elif p.kind == 'salu':
        if ('m0', 0) in p.w and ('m0', 0) in c.r: n = max(n, 1)
    return n

def pad(lines):
    out = []
    hist = []
    pos = 0
    for t in lines:
        ins = Ins(t)
        if ins.label:
            out.append(t); continue
        req = 0
        for (p, pp) in hist:
            gap = pos - pp
            req = max(req, need(p, ins) - gap)
        while req > 0:
            k = min(req, 16)
            out.append("    s_nop %d" % (k - 1)); pos += k; req -= k
        out.append(t)
        pos += ins.states
        hist.append((ins, pos))
        hist = [(p, pp) for (p, pp) in hist if pos - pp < 20]
    return out

class Asm:
    def __init__(self):
        self.lines = []
    def __call__(self, s):
        for l in s.strip('\n').split('\n'):
            l = l.strip()
            if not l: continue
            if l.endswith(':') or l.startswith('.'):
                self.lines.append(l)
            else:
                self.lines.append('    ' + l)
    def comment(self, s):
        self.lines.append('    ; ' + s)
    def text(self):
        return '\n'.join(pad_keep_comments(resolve_waits(self.lines))) + '\n'
    def ext(self, lst):
        for l in lst: self(l)

def pad_keep_comments(lines):
    return pad(lines)

def v(i, n=1):
    return "v%d" % i if n == 1 else "v[%d:%d]" % (i, i + n - 1)
def a(i, n=1):
    return "a%d" % i if n == 1 else "a[%d:%d]" % (i, i + n - 1)
def s(i, n=1):
    return "s%d" % i if n == 1 else "s[%d:%d]" % (i, i + n - 1)

def srd(A, d, base, nbytes, off=0):
    if off:
        A(f"s_add_u32 s{d}, s{base}, {off}")
        A(f"s_addc_u32 s{d+1}, s{base+1}, 0")
    else:
        A(f"s_mov_b32 s{d}, s{base}")
        A(f"s_mov_b32 s{d+1}, s{base+1}")
    A(f"s_mov_b32 s{d+2}, {nbytes}")
    A(f"s_mov_b32 s{d+3}, 0x00020000")

def kernel_header(A, name):
    A(f".globl {name}")
    A(".p2align 8")
    A(f".type {name},@function")
    A(f"{name}:")

def descriptor(name, vgpr, sgpr, accum):
    return f""".amdhsa_kernel {name}
  .amdhsa_next_free_vgpr {vgpr}
  .amdhsa_next_free_sgpr {sgpr}
  .amdhsa_accum_offset {accum}
  .amdhsa_group_segment_fixed_size 0
  .amdhsa_kernarg_size 96
  .amdhsa_user_sgpr_count 2
  .amdhsa_user_sgpr_kernarg_segment_ptr 1
  .amdhsa_system_sgpr_workgroup_id_x 1
.end_amdhsa_kernel
"""

import os
DIAG = os.environ.get('DIAG', '')
WS_DIAG = 0x4000000
def stamp(A, kern, idx):
    if kern in DIAG.split(','):
        A(f"s_memtime s[{60+2*idx}:{61+2*idx}]")
def dump_stamps(A, kern, n, ws_pair, nwaves, vt=250):
    if kern not in DIAG.split(','):
        return
    A("s_waitcnt lgkmcnt(0) vmcnt(0)")
    A(f"s_memtime s[{60+2*n}:{61+2*n}]")
    srd(A, 56, ws_pair, 1 << 20, WS_DIAG)
    A(f"v_lshrrev_b32 v{vt}, 6, v0")
    A(f"s_mul_i32 s55, s2, {nwaves}")
    A(f"v_add_u32 v{vt}, s55, v{vt}")
    A(f"v_lshlrev_b32 v{vt}, 6, v{vt}")
    A("s_waitcnt lgkmcnt(0)")
    for k in range(n + 1):
        A(f"v_mov_b32 v{vt+1}, s{60+2*k}")
        A(f"buffer_store_dword v{vt+1}, v{vt}, s[56:59], 0 offen offset:{4*k}")


def resolve_waits(lines):
    out = []
    VQ, LQ = [], []
    saved = {}
    waited = set()
    for l in lines:
        t = l.strip()
        if t.startswith(';@'):
            p = t[2:].split()
            if p[0] == 'save': saved[p[1]] = (list(VQ), list(LQ))
            elif p[0] == 'restore': VQ, LQ = list(saved[p[1]][0]), list(saved[p[1]][1]); waited = set()
            elif p[0] == 'reset': VQ, LQ = [], []
            elif p[0] in ('wv', 'wl'):
                Q = VQ if p[0] == 'wv' else LQ
                if p[0] == 'wv': waited.update(p[1:])
                idx = [i for i, x in enumerate(Q) if x in p[1:]]
                if idx:
                    n = len(Q) - 1 - max(idx)
                    lim = 63 if p[0] == 'wv' else 15
                    n = min(n, lim)
                    out.append(f"    s_waitcnt {'vmcnt' if p[0] == 'wv' else 'lgkmcnt'}({n})")
                    del Q[:len(Q) - n]
            else:
                raise ValueError(t)
            continue
        tag = None
        if ';@tag' in t:
            tag = t.split(';@tag')[1].split()[0]
            l = l.split(';@tag')[0].rstrip()
            t = l.strip()
        op = t.split()[0] if t and not t.startswith(';') else ''
        if op.startswith(('buffer_', 'global_')):
            if len(VQ) >= 63:
                out.append("    s_waitcnt vmcnt(62)")
                del VQ[:len(VQ) - 62]
            assert tag is None or tag not in waited, 'load issued after its wait: ' + t
            VQ.append(tag)
        elif op.startswith('ds_'):
            if len(LQ) >= 15:
                out.append("    s_waitcnt lgkmcnt(14)")
                del LQ[:len(LQ) - 14]
            LQ.append(tag)
        elif op == 's_waitcnt':
            m = re.search(r'vmcnt\((\d+)\)', t)
            if m and len(VQ) > int(m.group(1)): del VQ[:len(VQ) - int(m.group(1))]
            m = re.search(r'lgkmcnt\((\d+)\)', t)
            if m and len(LQ) > int(m.group(1)): del LQ[:len(LQ) - int(m.group(1))]
        elif op == 's_endpgm':
            VQ, LQ = [], []; waited = set()
        out.append(l)
    return out

def lines_of(s):
    return [l.strip() for l in s.strip('\n').split('\n') if l.strip()]

def interleave(main, fill, per=2, skip=0):
    out = []; fi = 0; nm = 0
    def take():
        nonlocal fi
        k = 0
        while fi < len(fill) and k < per:
            out.append(fill[fi])
            if not fill[fi].startswith(';@'): k += 1
            fi += 1
    for l in main:
        out.append(l)
        if l.startswith('v_mfma'):
            nm += 1
            if nm > skip: take()
    out += fill[fi:]
    return out

def spread(main, fill, every=None):
    real = [i for i, l in enumerate(main) if not l.startswith(';@')]
    n, k = len(real), len(fill)
    if k == 0: return list(main)
    pos = {}
    for j in range(k):
        at = real[min(n - 1, (j * n) // k)]
        pos.setdefault(at, []).append(fill[j])
    out = []
    for i, l in enumerate(main):
        out.append(l)
        for f in pos.get(i, []): out += f
    return out

def unpk(line):
    t = line.strip()
    m = re.match(r'v_pk_(mul|add|fma)_f32\s+(.*)', t)
    if not m: return [line]
    op = m.group(1)
    body = m.group(2)
    mods = dict((k, [int(x) for x in v_.split(',')]) for k, v_ in re.findall(r'(op_sel|op_sel_hi|neg_lo|neg_hi):\[([\d,]+)\]', body))
    body = re.sub(r'\s*(op_sel|op_sel_hi|neg_lo|neg_hi):\[[\d,]+\]', '', body)
    ops = split_ops(body)
    base = [int(re.match(r'v\[(\d+):', o).group(1)) for o in ops]
    n = len(ops) - 1
    sel = mods.get('op_sel', [0] * n); selh = mods.get('op_sel_hi', [1] * n)
    nl = mods.get('neg_lo', [0] * n); nh = mods.get('neg_hi', [0] * n)
    lo = [('-' if nl[i] else '') + f"v{base[i+1] + sel[i]}" for i in range(n)]
    hi = [('-' if nh[i] else '') + f"v{base[i+1] + selh[i]}" for i in range(n)]
    d = base[0]
    if any(x.lstrip('-') == f"v{d}" for x in hi):
        return [line]
    def one(dst, src):
        if op == 'fma' and src[2] == f"v{dst}" and not any(x.startswith('-') for x in src):
            return f"v_fmac_f32 v{dst}, {src[0]}, {src[1]}"
        return f"v_{op}_f32 v{dst}, " + ', '.join(src)
    return [one(d, lo), one(d + 1, hi)]

def schedule(lines, window=400, mem_gap=0):
    N = len(lines)
    items = []
    for l in lines:
        t = l.strip()
        if t.startswith(';@'):
            regs = []
            if 'regs=' in t:
                for part in t.split('regs=')[1].split(','):
                    m = re.match(r'([vas])(\d+)(?:-[vas]?(\d+))?', part.strip())
                    lo = int(m.group(2)); hi = int(m.group(3) or lo)
                    regs += [(m.group(1), i) for i in range(lo, hi + 1)]
                t = t.split('regs=')[0].strip()
            items.append(dict(text=t, kind='wait', r=[], w=regs, mem=True))
        else:
            ins = Ins(t.split(';@tag')[0])
            r, w = list(ins.r), list(ins.w)
            if ins.kind == 'salu':
                w = w + [('scc', 0)]
                if 'cselect' in ins.op or 'addc' in ins.op: r = r + [('scc', 0)]
            mem = ins.kind in ('vmem', 'ds')
            items.append(dict(text=t, kind=ins.kind, r=r, w=w, mem=mem, ins=ins))
    preds = [[] for _ in range(N)]
    lastw, readers, lastmem = {}, {}, None
    for i, it in enumerate(items):
        for x in it['r']:
            if x in lastw:
                p = lastw[x]; lat = 0
                if items[p]['kind'] == 'mfma':
                    same = it['kind'] == 'mfma' and items[p]['ins'].D == it['ins'].C and x in it['ins'].C and x not in it['ins'].A + it['ins'].B
                    lat = 0 if same else 40
                elif items[p]['kind'] == 'valu' and it['kind'] == 'mfma': lat = 12
                elif items[p]['kind'] == 'valu' and getattr(it.get('ins'), 'dpp', False): lat = 12
                elif items[p]['kind'] == 'valu' and x[0] in ('vcc', 's'): lat = 12
                preds[i].append((p, lat))
        for x in it['w']:
            if x in lastw:
                p = lastw[x]
                preds[i].append((p, 40 if items[p]['kind'] == 'mfma' and it['kind'] != 'mfma' else 0))
            for p in readers.get(x, []):
                if p != i: preds[i].append((p, 16 if items[p]['kind'] == 'mfma' and x in items[p]['ins'].C else 0))
        if it['mem']:
            if lastmem is not None: preds[i].append((lastmem, mem_gap if it['kind'] == 'vmem' else 0))
            lastmem = i
        for x in it['r']: readers.setdefault(x, []).append(i)
        for x in it['w']:
            lastw[x] = i; readers[x] = []
    done = [None] * N
    out, now, pipe = [], 0, 0
    remaining = list(range(N))
    while remaining:
        best = None
        cands = []
        for i in remaining[:window]:
            if all(done[p] is not None for p, _ in preds[i]):
                rt = max([done[p] + lat for p, lat in preds[i]] + [0])
                if items[i]['kind'] == 'mfma': rt = max(rt, pipe)
                cands.append((i, rt))
        ready = [c for c in cands if c[1] <= now]
        if ready:
            mf = [c for c in ready if items[c[0]]['kind'] == 'mfma']
            best = (mf or ready)[0]
        else:
            best = min(cands, key=lambda c: (c[1], c[0]))
            now = best[1]
        i = best[0]
        done[i] = now
        k = items[i]['kind']
        if k == 'mfma':
            pipe = now + 16; now += 8
        elif k == 'wait': pass
        else: now += 4
        out.append(items[i]['text'])
        remaining.remove(i)
    return out
```

```python
import re, struct

def f32bits(x):
    return struct.unpack('<I', struct.pack('<f', x))[0]
def fl(x):
    return "0x%08x" % f32bits(x)

REG_RE = re.compile(r'\b([vas])(\d+)\b|\b([vas])\[(\d+):(\d+)\]|\b(vcc|exec|m0|scc)\b')

def regs_of(op):
    out = []
    for m in REG_RE.finditer(op):
        if m.group(1):
            out.append((m.group(1), int(m.group(2))))
        elif m.group(3):
            out += [(m.group(3), i) for i in range(int(m.group(4)), int(m.group(5)) + 1)]
        else:
            out.append((m.group(6), 0))
    return out

def split_ops(s):
    ops, depth, cur = [], 0, ''
    for ch in s:
        if ch == '[': depth += 1
        if ch == ']': depth -= 1
        if ch == ',' and depth == 0:
            ops.append(cur.strip()); cur = ''
        else:
            cur += ch
    if cur.strip(): ops.append(cur.strip())
    return ops

TRANS = ('v_exp_f32', 'v_log_f32', 'v_rcp_f32', 'v_rsq_f32', 'v_sqrt_f32', 'v_sin_f32', 'v_cos_f32', 'v_rcp_iflag_f32')

class Ins:
    def __init__(self, text):
        self.text = text
        t = text.split(';')[0].strip()
        self.label = t.endswith(':') or t.startswith('.') or t == ''
        self.kind = None
        self.w, self.r = [], []
        self.states = 1
        if self.label:
            self.states = 0
            return
        parts = t.split(None, 1)
        op = parts[0]; rest = parts[1] if len(parts) > 1 else ''
        self.op = op
        ops = split_ops(rest)
        if ops:
            last = ops[-1].split()
            self.mods = ' '.join(last[1:])
            ops[-1] = last[0] if last else ''
        else:
            self.mods = ''
        self.ops = ops
        R = [regs_of(o) for o in ops]
        if op == 's_nop':
            self.kind = 'nop'; self.states = int(ops[0], 0) + 1
        elif op.startswith('v_mfma'):
            self.kind = 'mfma'
            self.D, self.A, self.B, self.C = R[0], R[1], R[2], R[3]
            self.w = R[0]; self.r = R[1] + R[2] + R[3]
            self.passes = 8 if '32x32' in op else 4
        elif op.startswith('v_'):
            self.kind = 'valu'
            self.trans = op.replace('_e32', '').replace('_e64', '') in TRANS
            self.dpp = ('dpp' in op) or ('quad_perm' in self.mods) or ('row_' in self.mods)
            self.dot = op.startswith('v_dot')
            self.perml = op.startswith('v_permlane')
            self.rdl = op.startswith('v_readlane') or op.startswith('v_readfirstlane')
            if self.perml or op.startswith('v_swap'):
                self.w = R[0] + R[1]; self.r = R[0] + R[1]
            elif op.startswith(('v_add_co', 'v_sub_co', 'v_subrev_co', 'v_addc_co', 'v_subb_co', 'v_mad_u64', 'v_div_scale')):
                self.w = R[0] + R[1]; self.r = sum(R[2:], [])
            else:
                self.w = R[0]; self.r = sum(R[1:], [])
                if op.startswith(('v_fmac', 'v_dot2c', 'v_pk_fmac', 'v_writelane')) or self.dpp:
                    self.r = self.r + R[0]
                if op.startswith('v_cndmask') and len(ops) == 3:
                    self.r.append(('vcc', 0))
        elif op.startswith(('buffer_', 'global_', 'flat_')):
            self.kind = 'vmem'
            self.lds = ' lds' in (' ' + self.mods)
            isstore = 'store' in op or ('atomic' in op)
            self.wide = isstore and (op.endswith('x4') or op.endswith('x3'))
            if isstore or self.lds:
                self.r = sum(R, [])
                self.data = R[0] if op.startswith('buffer_') else R[1]
                if self.lds: self.r.append(('m0', 0))
                if 'atomic' in op and 'sc0' in self.mods:
                    self.w = R[0]
            else:
                self.w = R[0]; self.r = sum(R[1:], [])
                if 'd16' in op: self.r = self.r + R[0]
        elif op.startswith('ds_'):
            self.kind = 'ds'
            if op.startswith(('ds_read', 'ds_bpermute', 'ds_permute', 'ds_swizzle')) or '_rtn' in op:
                self.w = R[0]; self.r = sum(R[1:], [])
            else:
                self.r = sum(R, [])
        elif op.startswith('s_'):
            self.kind = 'salu'
            if op.startswith(('s_cmp', 's_cbranch', 's_branch', 's_waitcnt', 's_barrier', 's_endpgm', 's_setprio', 's_sleep', 's_bitcmp')):
                self.r = sum(R, [])
            else:
                self.w = R[0] if R else []; self.r = sum(R[1:], [])
                if 'saveexec' in op: self.w = self.w + [('exec', 0)]
        else:
            raise ValueError("unknown instr: " + text)

def ov(a, b):
    return bool(set(a) & set(b))

def need(p, c):
    n = 0
    isS = lambda regs: [x for x in regs if x[0] in ('s', 'vcc')]
    isV = lambda regs: [x for x in regs if x[0] in ('v', 'a')]
    if p.kind == 'valu':
        pw = isV(p.w); ps = isS(p.w)
        if c.kind == 'mfma' and ov(pw, c.r): n = max(n, 2)
        if c.kind == 'valu':
            if p.trans and not c.trans and ov(pw, c.r): n = max(n, 1)
            if p.trans and c.trans and ov(pw, c.r): n = max(n, 1)
            if c.dpp and ov(pw, c.r): n = max(n, 2)
            if c.rdl and ov(pw, c.r): n = max(n, 1)
            if c.perml and ov(pw, c.r): n = max(n, 2)
            if ov(ps, c.r): n = max(n, 4 if c.rdl or c.op.startswith('v_writelane') else 2)
            if p.dot:
                same = c.op == p.op
                if same:
                    srcab = [x for x in c.r if x not in c.w] if c.op.startswith('v_dot2c') else regs_of(c.ops[1]) + regs_of(c.ops[2])
                    if ov(pw, srcab): n = max(n, 3)
                elif ov(pw, c.r + c.w): n = max(n, 3)
            if ('sdwa' in p.op or 'op_sel' in p.mods and not p.op.startswith('v_pk')) and ov(pw, c.r + c.w): n = max(n, 1)
        if p.dot and c.kind in ('vmem', 'ds', 'mfma') and ov(pw, c.r + c.w): n = max(n, 3)
        if p.trans and c.kind in ('vmem', 'ds') and ov(pw, c.r): n = max(n, 1)
        if c.kind == 'vmem' and ov(ps, c.r): n = max(n, 5)
        if c.kind == 'salu' and ov(ps, c.r): n = max(n, 3)
        if ('exec', 0) in p.w: n = max(n, 5)
    elif p.kind == 'mfma':
        big = {4: 8, 8: 12}[p.passes]; part = {4: 6, 8: 10}[p.passes]; war = {4: 3, 8: 7}[p.passes]
        if c.kind == 'mfma':
            if ov(p.D, c.A + c.B): n = max(n, big)
            if ov(p.D, c.C) and not (p.D == c.C and p.passes == c.passes): n = max(n, part)
            if ov(p.D, c.D) and p.D != c.D: n = max(n, part)
        elif c.kind in ('valu', 'vmem', 'ds'):
            if ov(p.D, c.r + c.w): n = max(n, big)
            if c.kind == 'valu' and ov(p.C, c.w): n = max(n, war)
            if c.kind in ('vmem', 'ds') and ov(p.C, c.w): n = max(n, war)
    elif p.kind == 'vmem':
        if getattr(p, 'wide', False) and ov(p.data, c.w):
            n = max(n, 2)
    elif p.kind == 'ds':
        if p.op in ('ds_write_b128', 'ds_write_b96') and c.kind == 'valu' and ov(p.r, c.w):
            n = max(n, 1)
    elif p.kind == 'salu':
        if ('m0', 0) in p.w and ('m0', 0) in c.r: n = max(n, 1)
    return n

def pad(lines):
    out = []
    hist = []
    pos = 0
    for t in lines:
        ins = Ins(t)
        if ins.label:
            out.append(t); continue
        req = 0
        for (p, pp) in hist:
            gap = pos - pp
            req = max(req, need(p, ins) - gap)
        while req > 0:
            k = min(req, 16)
            out.append("    s_nop %d" % (k - 1)); pos += k; req -= k
        out.append(t)
        pos += ins.states
        hist.append((ins, pos))
        hist = [(p, pp) for (p, pp) in hist if pos - pp < 20]
    return out

class Asm:
    def __init__(self):
        self.lines = []
    def __call__(self, s):
        for l in s.strip('\n').split('\n'):
            l = l.strip()
            if not l: continue
            if l.endswith(':') or l.startswith('.'):
                self.lines.append(l)
            else:
                self.lines.append('    ' + l)
    def comment(self, s):
        self.lines.append('    ; ' + s)
    def text(self):
        return '\n'.join(pad_keep_comments(resolve_waits(self.lines))) + '\n'
    def ext(self, lst):
        for l in lst: self(l)

def pad_keep_comments(lines):
    return pad(lines)

def v(i, n=1):
    return "v%d" % i if n == 1 else "v[%d:%d]" % (i, i + n - 1)
def a(i, n=1):
    return "a%d" % i if n == 1 else "a[%d:%d]" % (i, i + n - 1)
def s(i, n=1):
    return "s%d" % i if n == 1 else "s[%d:%d]" % (i, i + n - 1)

def srd(A, d, base, nbytes, off=0):
    if off:
        A(f"s_add_u32 s{d}, s{base}, {off}")
        A(f"s_addc_u32 s{d+1}, s{base+1}, 0")
    else:
        A(f"s_mov_b32 s{d}, s{base}")
        A(f"s_mov_b32 s{d+1}, s{base+1}")
    A(f"s_mov_b32 s{d+2}, {nbytes}")
    A(f"s_mov_b32 s{d+3}, 0x00020000")

def kernel_header(A, name):
    A(f".globl {name}")
    A(".p2align 8")
    A(f".type {name},@function")
    A(f"{name}:")

def descriptor(name, vgpr, sgpr, accum):
    return f""".amdhsa_kernel {name}
  .amdhsa_next_free_vgpr {vgpr}
  .amdhsa_next_free_sgpr {sgpr}
  .amdhsa_accum_offset {accum}
  .amdhsa_group_segment_fixed_size 0
  .amdhsa_kernarg_size 96
  .amdhsa_user_sgpr_count 2
  .amdhsa_user_sgpr_kernarg_segment_ptr 1
  .amdhsa_system_sgpr_workgroup_id_x 1
.end_amdhsa_kernel
"""

import os
DIAG = os.environ.get('DIAG', '')
WS_DIAG = 0x4000000
def stamp(A, kern, idx):
    if kern in DIAG.split(','):
        A(f"s_memtime s[{60+2*idx}:{61+2*idx}]")
def dump_stamps(A, kern, n, ws_pair, nwaves, vt=250):
    if kern not in DIAG.split(','):
        return
    A("s_waitcnt lgkmcnt(0) vmcnt(0)")
    A(f"s_memtime s[{60+2*n}:{61+2*n}]")
    srd(A, 56, ws_pair, 1 << 20, WS_DIAG)
    A(f"v_lshrrev_b32 v{vt}, 6, v0")
    A(f"s_mul_i32 s55, s2, {nwaves}")
    A(f"v_add_u32 v{vt}, s55, v{vt}")
    A(f"v_lshlrev_b32 v{vt}, 6, v{vt}")
    A("s_waitcnt lgkmcnt(0)")
    for k in range(n + 1):
        A(f"v_mov_b32 v{vt+1}, s{60+2*k}")
        A(f"buffer_store_dword v{vt+1}, v{vt}, s[56:59], 0 offen offset:{4*k}")


def resolve_waits(lines):
    out = []
    VQ, LQ = [], []
    saved = {}
    waited = set()
    for l in lines:
        t = l.strip()
        if t.startswith(';@'):
            p = t[2:].split()
            if p[0] == 'save': saved[p[1]] = (list(VQ), list(LQ))
            elif p[0] == 'restore': VQ, LQ = list(saved[p[1]][0]), list(saved[p[1]][1]); waited = set()
            elif p[0] == 'restore2': VQ, LQ = list(saved[p[1]][0]), list(saved[p[1]][1])
            elif p[0] == 'reset': VQ, LQ = [], []
            elif p[0] in ('wv', 'wl'):
                Q = VQ if p[0] == 'wv' else LQ
                if p[0] == 'wv': waited.update(p[1:])
                idx = [i for i, x in enumerate(Q) if x in p[1:]]
                if idx:
                    n = len(Q) - 1 - max(idx)
                    lim = 63 if p[0] == 'wv' else 15
                    n = min(n, lim)
                    out.append(f"    s_waitcnt {'vmcnt' if p[0] == 'wv' else 'lgkmcnt'}({n})")
                    del Q[:len(Q) - n]
            else:
                raise ValueError(t)
            continue
        tag = None
        if ';@tag' in t:
            tag = t.split(';@tag')[1].split()[0]
            l = l.split(';@tag')[0].rstrip()
            t = l.strip()
        op = t.split()[0] if t and not t.startswith(';') else ''
        if op.startswith(('buffer_', 'global_')):
            if len(VQ) >= 63:
                out.append("    s_waitcnt vmcnt(62)")
                del VQ[:len(VQ) - 62]
            assert tag is None or tag not in waited, 'load issued after its wait: ' + t
            VQ.append(tag)
        elif op.startswith('ds_'):
            if len(LQ) >= 15:
                out.append("    s_waitcnt lgkmcnt(14)")
                del LQ[:len(LQ) - 14]
            LQ.append(tag)
        elif op == 's_waitcnt':
            m = re.search(r'vmcnt\((\d+)\)', t)
            if m and len(VQ) > int(m.group(1)): del VQ[:len(VQ) - int(m.group(1))]
            m = re.search(r'lgkmcnt\((\d+)\)', t)
            if m and len(LQ) > int(m.group(1)): del LQ[:len(LQ) - int(m.group(1))]
        elif op == 's_endpgm':
            VQ, LQ = [], []; waited = set()
        out.append(l)
    return out

def lines_of(s):
    return [l.strip() for l in s.strip('\n').split('\n') if l.strip()]

def interleave(main, fill, per=2, skip=0):
    out = []; fi = 0; nm = 0
    def take():
        nonlocal fi
        k = 0
        while fi < len(fill) and k < per:
            out.append(fill[fi])
            if not fill[fi].startswith(';@'): k += 1
            fi += 1
    for l in main:
        out.append(l)
        if l.startswith('v_mfma'):
            nm += 1
            if nm > skip: take()
    out += fill[fi:]
    return out

def spread(main, fill, every=None):
    real = [i for i, l in enumerate(main) if not l.startswith(';@')]
    n, k = len(real), len(fill)
    if k == 0: return list(main)
    pos = {}
    for j in range(k):
        at = real[min(n - 1, (j * n) // k)]
        pos.setdefault(at, []).append(fill[j])
    out = []
    for i, l in enumerate(main):
        out.append(l)
        for f in pos.get(i, []): out += f
    return out

def unpk(line):
    t = line.strip()
    m = re.match(r'v_pk_(mul|add|fma)_f32\s+(.*)', t)
    if not m: return [line]
    op = m.group(1)
    body = m.group(2)
    mods = dict((k, [int(x) for x in v_.split(',')]) for k, v_ in re.findall(r'(op_sel|op_sel_hi|neg_lo|neg_hi):\[([\d,]+)\]', body))
    body = re.sub(r'\s*(op_sel|op_sel_hi|neg_lo|neg_hi):\[[\d,]+\]', '', body)
    ops = split_ops(body)
    base = [int(re.match(r'v\[(\d+):', o).group(1)) for o in ops]
    n = len(ops) - 1
    sel = mods.get('op_sel', [0] * n); selh = mods.get('op_sel_hi', [1] * n)
    nl = mods.get('neg_lo', [0] * n); nh = mods.get('neg_hi', [0] * n)
    lo = [('-' if nl[i] else '') + f"v{base[i+1] + sel[i]}" for i in range(n)]
    hi = [('-' if nh[i] else '') + f"v{base[i+1] + selh[i]}" for i in range(n)]
    d = base[0]
    if any(x.lstrip('-') == f"v{d}" for x in hi):
        return [line]
    def one(dst, src):
        if op == 'fma' and src[2] == f"v{dst}" and not any(x.startswith('-') for x in src):
            return f"v_fmac_f32 v{dst}, {src[0]}, {src[1]}"
        return f"v_{op}_f32 v{dst}, " + ', '.join(src)
    return [one(d, lo), one(d + 1, hi)]

def schedule(lines, window=400, mem_gap=0):
    N = len(lines)
    items = []
    for l in lines:
        t = l.strip()
        if t.startswith(';@'):
            regs = []
            if 'regs=' in t:
                for part in t.split('regs=')[1].split(','):
                    m = re.match(r'([vas])(\d+)(?:-[vas]?(\d+))?', part.strip())
                    lo = int(m.group(2)); hi = int(m.group(3) or lo)
                    regs += [(m.group(1), i) for i in range(lo, hi + 1)]
                t = t.split('regs=')[0].strip()
            items.append(dict(text=t, kind='wait', r=[], w=regs, mem=True))
        else:
            ins = Ins(t.split(';@tag')[0])
            r, w = list(ins.r), list(ins.w)
            if ins.kind == 'salu':
                w = w + [('scc', 0)]
                if 'cselect' in ins.op or 'addc' in ins.op: r = r + [('scc', 0)]
            mem = ins.kind in ('vmem', 'ds')
            items.append(dict(text=t, kind=ins.kind, r=r, w=w, mem=mem, ins=ins))
    preds = [[] for _ in range(N)]
    lastw, readers, lastmem = {}, {}, None
    for i, it in enumerate(items):
        for x in it['r']:
            if x in lastw:
                p = lastw[x]; lat = 0
                if items[p]['kind'] == 'mfma':
                    same = it['kind'] == 'mfma' and items[p]['ins'].D == it['ins'].C and x in it['ins'].C and x not in it['ins'].A + it['ins'].B
                    lat = 0 if same else 40
                elif items[p]['kind'] == 'valu' and it['kind'] == 'mfma': lat = 12
                elif items[p]['kind'] == 'valu' and getattr(it.get('ins'), 'dpp', False): lat = 12
                elif items[p]['kind'] == 'valu' and x[0] in ('vcc', 's'): lat = 12
                preds[i].append((p, lat))
        for x in it['w']:
            if x in lastw:
                p = lastw[x]
                preds[i].append((p, 40 if items[p]['kind'] == 'mfma' and it['kind'] != 'mfma' else 0))
            for p in readers.get(x, []):
                if p != i: preds[i].append((p, 16 if items[p]['kind'] == 'mfma' and x in items[p]['ins'].C else 0))
        if it['mem']:
            if lastmem is not None: preds[i].append((lastmem, mem_gap if it['kind'] == 'vmem' else 0))
            lastmem = i
        for x in it['r']: readers.setdefault(x, []).append(i)
        for x in it['w']:
            lastw[x] = i; readers[x] = []
    done = [None] * N
    out, now, pipe = [], 0, 0
    remaining = list(range(N))
    while remaining:
        best = None
        cands = []
        for i in remaining[:window]:
            if all(done[p] is not None for p, _ in preds[i]):
                rt = max([done[p] + lat for p, lat in preds[i]] + [0])
                if items[i]['kind'] == 'mfma': rt = max(rt, pipe)
                cands.append((i, rt))
        ready = [c for c in cands if c[1] <= now]
        if ready:
            mf = [c for c in ready if items[c[0]]['kind'] == 'mfma']
            best = (mf or ready)[0]
        else:
            best = min(cands, key=lambda c: (c[1], c[0]))
            now = best[1]
        i = best[0]
        done[i] = now
        k = items[i]['kind']
        if k == 'mfma':
            pipe = now + 16; now += 8
        elif k == 'wait': pass
        else: now += 4
        out.append(items[i]['text'])
        remaining.remove(i)
    return out

def atomize(lines):
    out = []
    for l in lines:
        l = l.strip()
        op = l.split()[0] if l else ''
        if out and op.startswith(('s_addc', 's_subb', 's_cselect', 's_cbranch')):
            out[-1] = out[-1] + '\n' + l
        else:
            out.append(l)
    return out

def weave(main, units):
    mf = [i for i, l in enumerate(main) if l.startswith('v_mfma')]
    n, k = len(mf), len(units)
    pos = {}
    for j in range(k):
        pos.setdefault(mf[min(n - 1, (j * n) // k)], []).append(units[j])
    out = []
    for i, l in enumerate(main):
        out.append(l)
        for u in pos.get(i, []): out += u
    return out
def units_of(lines):
    out, cur = [], []
    for l in lines:
        cur.append(l)
        if not l.startswith(';@'):
            out.append(cur); cur = []
    if cur: out.append(cur)
    return out
def mix(a_, b_):
    out, i, j = [], 0, 0
    while i < len(a_) or j < len(b_):
        if j >= len(b_) or (i < len(a_) and i * len(b_) <= j * len(a_)):
            out.append(a_[i]); i += 1
        else:
            out.append(b_[j]); j += 1
    return out
```

```python
from asmlib import *
from layout import *

K1_FFT = 128
K1_MOD = 96
K1_WPK = 128
K1_TP = 120 if os.environ.get('SENT', '0') == '1' else 0
K1_PF = 8
K1_GRID = K1_FFT + K1_MOD + K1_WPK + K1_TP + K1_PF
K1_LDS = 4096 + 32 * 528

POSC = "" if os.environ.get('K3V', '7') != '4' else """
    v_and_b32 v20, 0x183, v17
    v_bfe_u32 v19, v17, 2, 1
    v_lshl_add_u32 v20, v19, 6, v20
    v_bfe_u32 v19, v17, 3, 4
    v_lshl_add_u32 v20, v19, 2, v20
    s_cmp_eq_u32 s23, 2
    s_cselect_b64 vcc, -1, 0
    v_cndmask_b32 v17, v17, v20, vcc
"""

def gen_k1(A, name, pf_start_label, pf_bytes):
    kernel_header(A, name)
    A(f"""
    s_getpc_b64 s[40:41]
    v_lshlrev_b32 v1, 5, v0
    global_load_dword v200, v1, s[40:41]
    s_cmp_ge_u32 s2, {K1_FFT}
    s_cbranch_scc1 L_k1_side
    s_load_dwordx2 s[4:5], s[0:1], {KA_X}
    s_load_dwordx2 s[6:7], s[0:1], {KA_WS}
    """)
    stamp(A, 'k1', 0)
    A("""
    s_and_b32 s20, s2, 31
    s_lshr_b32 s21, s2, 5
    v_and_b32 v1, 15, v0            ; m / n
    v_bfe_u32 v2, v0, 4, 2          ; g
    v_lshrrev_b32 v3, 6, v0         ; w
    v_lshlrev_b32 v4, 18, v2
    v_lshl_add_u32 v4, v3, 8, v4
    v_lshl_add_u32 v4, v1, 4, v4    ; g*256K + w*256 + m*16
    s_lshl_b32 s22, s20, 10
    s_waitcnt lgkmcnt(0)
    """)
    stamp(A, 'k1', 1)
    srd(A, 8, 4, 2097152)
    L = lambda kk, i: 16 + (kk * 8 + i) * 4
    def xload(q):
        A(f"""
        s_add_u32 s28, s21, {q}
        s_and_b32 s{30+q}, s28, 3
        s_lshr_b32 s29, s{30+q}, 1
        s_lshl_b32 s29, s29, 20
        s_and_b32 s28, s28, 1
        s_lshl_b32 s28, s28, 17
        s_add_u32 s28, s28, s29
        s_add_u32 s28, s28, s22
        """)
        for i in range(4):
            if i: A(f"s_add_u32 s28, s28, 32768")
            A(f"buffer_load_dwordx4 {v(16 + (q*4+i)*4, 4)}, v4, s[8:11], s28 offen")
    xload(0); xload(1)
    srd(A, 12, 6, SZ_ABUF, WS_ABUF)
    stamp(A, 'k1', 2)
    FC = lambda nt, c, kk: 128 + ((nt * 2 + c) * 2 + kk) * 4
    CS, SN = 160, 168
    A(f"""
    v_cvt_f32_u32 v5, v1
    v_mul_f32 v5, {fl(1/64)}, v5            ; n/64
    v_lshlrev_b32 v6, 3, v2
    v_cvt_f32_u32 v6, v6                     ; 8g
    v_mul_f32 v6, v5, v6                     ; n*8g/64
    """)
    for i in range(8):
        if i % 4 == 0:
            q = i // 4
            A(f"""
            s_lshr_b32 s28, s{30+q}, 1
            s_lshl_b32 s28, s28, 5
            s_and_b32 s29, s{30+q}, 1
            s_lshl_b32 s29, s29, 2
            s_add_u32 s28, s28, s29
            v_cvt_f32_u32 v7, s28
            v_fma_f32 v7, v7, v5, v6
            """)
        else:
            A(f"v_add_f32 v7, v7, v5")
        A(f"v_cos_f32 v{CS+i}, v7")
        A(f"v_sin_f32 v{SN+i}, v7")
    def term(kind, i):
        c_, s_ = f"v{CS+i}", f"v{SN+i}"
        return {'c': c_, '-c': '-' + c_, 's': s_, '-s': '-' + s_}[kind]
    tab = {(0, 0): ['c'] * 4, (0, 1): ['-s'] * 4,
           (1, 0): ['c', '-s', '-c', 's'], (1, 1): ['-s', '-c', 's', 'c']}
    for nt in range(2):
        for c in range(2):
            for d in range(4):
                i0, i1 = 2 * d, 2 * d + 1
                A(f"v_cvt_pk_bf16_f32 v{FC(nt,c,0)+d}, {term(tab[(nt,c)][i0%4], i0)}, {term(tab[(nt,c)][i1%4], i1)}")
    A("""
    v_cmp_eq_u32 vcc, 0, v1
    v_mov_b32 v8, 0xbf803f80
    v_and_b32 v9, 1, v1
    v_sub_u32 v9, 0, v9
    v_and_b32 v9, 0x80008000, v9
    """)
    for d in range(4):
        A(f"v_cndmask_b32 v{FC(0,1,0)+d}, v{FC(0,1,0)+d}, v8, vcc")
    for nt in range(2):
        for c in range(2):
            for d in range(4):
                A(f"v_xor_b32 v{FC(nt,c,1)+d}, v9, v{FC(nt,c,0)+d}")
    S0, Q0 = 80, 96
    for k in range(16):
        A(f"v_mov_b64 v[{S0+2*k}:{S0+2*k+1}], 0")
    A("s_mov_b32 s24, 0x3f803f80")
    A("s_mov_b32 s25, 0xffff0000")
    A("""
    v_bfe_u32 v10, v0, 3, 1                 ; b3 = stat
    v_bfe_u32 v11, v0, 2, 1                 ; b2 = kk
    v_lshlrev_b32 v10, 8, v10
    v_lshl_add_u32 v10, v3, 9, v10          ; w*512 + st*256
    v_lshl_add_u32 v10, v11, 7, v10         ; + kk*128
    v_lshl_add_u32 v10, v2, 5, v10
    v_and_b32 v11, 63, v0
    v_lshlrev_b32 v11, 2, v11
    v_lshl_add_u32 v12, v3, 9, v11
    v_lshlrev_b32 v13, 9, v3
    v_lshl_add_u32 v13, v2, 5, v13
    v_mul_u32_u24 v14, 528, v1
    v_lshl_add_u32 v15, v3, 2, v2
    v_lshl_add_u32 v14, v15, 4, v14
    v_bfe_u32 v112, v0, 5, 1
    v_lshl_add_u32 v112, v3, 3, v112        ; row (k = 0)
    v_and_b32 v113, 31, v0
    v_mul_u32_u24 v15, 528, v112
    v_lshl_add_u32 v15, v113, 4, v15
    v_lshlrev_b32 v112, 16, v112
    v_lshl_add_u32 v112, v113, 4, v112
    s_lshl_b32 s26, s20, 11
    s_lshl_b32 s27, s21, 9
    s_add_u32 s26, s26, s27                 ; s2*2048 + p*512
    s_add_u32 s27, s26, 0x100000
    """)
    xload(2); xload(3)
    stamp(A, 'k1', 3)
    for k in range(16):
        A(f"s_waitcnt vmcnt({15-k})")
        if k == 1: stamp(A, 'k1', 4)
        for j in range(4):
            A(f"v_dot2c_f32_bf16 v{S0+k}, s24, v{16+4*k+j}")
            A(f"v_dot2c_f32_bf16 v{Q0+k}, v{16+4*k+j}, v{16+4*k+j}")
    stamp(A, 'k1', 5)
    for k in range(16):
        A(f"v_add_f32_dpp v{S0+k}, v{S0+k}, v{S0+k} row_ror:8 row_mask:0xf bank_mask:0x3")
        A(f"v_add_f32_dpp v{S0+k}, v{Q0+k}, v{Q0+k} row_ror:8 row_mask:0xf bank_mask:0xc")
    for k in range(8):
        A(f"v_add_f32_dpp v{S0+k}, v{S0+k}, v{S0+k} row_shl:4 row_mask:0xf bank_mask:0x5")
        A(f"v_add_f32_dpp v{S0+k}, v{S0+8+k}, v{S0+8+k} row_shr:4 row_mask:0xf bank_mask:0xa")
    for k in range(8):
        A(f"v_add_f32_dpp v{S0+k}, v{S0+k}, v{S0+k} quad_perm:[1,0,3,2] row_mask:0xf bank_mask:0xf")
    for k in range(8):
        A(f"v_add_f32_dpp v{S0+k}, v{S0+k}, v{S0+k} quad_perm:[2,3,0,1] row_mask:0xf bank_mask:0xf")
    A(f"ds_write_b128 v10, v[{S0}:{S0+3}]")
    A(f"ds_write_b128 v10, v[{S0+4}:{S0+7}] offset:16")
    T = lambda e, k: 176 + e * 16 + k
    for p in range(4):
        if p < 3:
            A(f"s_cmp_lg_u32 s21, {p}")
            A(f"s_cbranch_scc1 L_k1_p{p+1}")
        for k in range(16):
            A(f"v_lshlrev_b32 v{T(0,k)}, 16, v{16+4*k+p}")
            A(f"v_and_b32 v{T(1,k)}, s25, v{16+4*k+p}")
        if p < 3:
            A("s_branch L_k1_pdone")
            A(f"L_k1_p{p+1}:")
    A("L_k1_pdone:")
    stamp(A, 'k1', 6)
    A("""
    s_waitcnt lgkmcnt(0)
    s_barrier
    ds_read2st64_b32 v[96:97], v11 offset0:0 offset1:1
    ds_read2st64_b32 v[98:99], v11 offset0:2 offset1:3
    ds_read2st64_b32 v[100:101], v11 offset0:4 offset1:5
    ds_read2st64_b32 v[102:103], v11 offset0:6 offset1:7
    s_waitcnt lgkmcnt(0)
    v_pk_add_f32 v[96:97], v[96:97], v[98:99]
    v_pk_add_f32 v[100:101], v[100:101], v[102:103]
    v_pk_add_f32 v[96:97], v[96:97], v[100:101]
    """)
    A(f"""
    v_mul_f32 v96, {fl(1/512)}, v96          ; mean
    v_mul_f32 v97, {fl(1/512)}, v97          ; E[x^2]
    v_fma_f32 v97, -v96, v96, v97
    v_max_f32 v97, 0, v97
    v_add_f32 v97, {fl(1e-5)}, v97
    v_rsq_f32 v97, v97
    v_mul_f32 v96, -1.0, v96
    v_mul_f32 v96, v96, v97                  ; -mean*rstd
    ds_write2st64_b32 v12, v97, v96 offset0:8 offset1:9
    s_waitcnt lgkmcnt(0)
    """)
    for kk in range(2):
        for h in range(2):
            A(f"ds_read_b128 v[{80+kk*8+h*4}:{80+kk*8+h*4+3}], v13 offset:{2048 + kk*128 + h*16}")
            A(f"ds_read_b128 v[{96+kk*8+h*4}:{96+kk*8+h*4+3}], v13 offset:{2048 + 256 + kk*128 + h*16}")
    stamp(A, 'k1', 7)
    DF = lambda e, kk: 16 + (e * 2 + kk) * 4
    ACC = lambda e, nt, c: 32 + ((e * 2 + nt) * 2 + c) * 4
    for kk in range(2):
        A(f"s_waitcnt lgkmcnt({4 if kk == 0 else 0})")
        for e in range(2):
            for d in range(4):
                k = kk * 8 + 2 * d
                A(f"v_pk_fma_f32 v[{T(e,k)}:{T(e,k)+1}], v[{T(e,k)}:{T(e,k)+1}], v[{80+k}:{81+k}], v[{96+k}:{97+k}]")
            for d in range(4):
                k = kk * 8 + 2 * d
                A(f"v_cvt_pk_bf16_f32 v{DF(e,kk)+d}, v{T(e,k)}, v{T(e,k)+1}")
        for e in range(2):
            for nt in range(2):
                for c in range(2):
                    cin = "0" if kk == 0 else v(ACC(e, nt, c), 4)
                    A(f"v_mfma_f32_16x16x32_bf16 {v(ACC(e,nt,c),4)}, {v(DF(e,kk),4)}, {v(FC(nt,c,kk),4)}, {cin}")
    for e in range(2):
        for nt in range(2):
            o = 64 + (e * 2 + nt) * 4
            for r in range(4):
                A(f"v_cvt_pk_bf16_f32 v{o+r}, v{ACC(e,nt,0)+r}, v{ACC(e,nt,1)+r}")
            A(f"ds_write_b128 v14, {v(o,4)} offset:{4096 + nt*16*528 + e*256}")
    A("s_waitcnt lgkmcnt(0)")
    A("s_barrier")
    for k in range(4):
        A(f"ds_read_b128 {v(64+4*k,4)}, v15 offset:{4096 + k*2*528}")
    for k in range(4):
        A(f"s_waitcnt lgkmcnt({3-k})")
        A(f"buffer_store_dwordx4 {v(64+4*k,4)}, v112, s[12:15], s26 offen")
        if k < 3: A("s_add_u32 s26, s26, 0x20000")
    stamp(A, 'k1', 8)
    dump_stamps(A, 'k1', 9, 6, 4, vt=2)
    A("s_endpgm")

    A("L_k1_side:")
    A(f"""
    s_cmp_ge_u32 s2, {K1_FFT + K1_MOD}
    s_cbranch_scc1 L_k1_pf
    s_load_dwordx4 s[4:7], s[0:1], {KA_C}     ; c, w_mod
    s_load_dwordx2 s[16:17], s[0:1], {KA_WS}
    s_sub_u32 s20, s2, {K1_FFT}
    s_and_b32 s21, s20, 7
    s_lshr_b32 s22, s20, 4
    s_lshl_b32 s22, s22, 3
    s_add_u32 s21, s21, s22
    s_lshl_b32 s21, s21, 1
    s_bfe_u32 s22, s20, 0x10003
    s_add_u32 s21, s21, s22                   ; cg 0..95
    v_and_b32 v1, 3, v0                       ; cq
    v_lshrrev_b32 v2, 2, v0                   ; rg 0..63
    v_mul_u32_u24 v3, 6144, v2
    v_lshl_add_u32 v3, v1, 4, v3
    v_lshlrev_b32 v4, 1, v2
    s_lshl_b32 s22, s21, 6
    s_waitcnt lgkmcnt(0)
    """)
    srd(A, 8, 6, 512 * 6144)
    srd(A, 12, 4, 1024)
    for j in range(8):
        A(f"buffer_load_ushort v{8+j}, v4, s[12:15], 0 offen offset:{j*128}")
    for j in range(8):
        A(f"s_add_u32 s23, s22, {j * 64 * 6144}")
        A(f"buffer_load_dwordx4 {v(16+4*j,4)}, v3, s[8:11], s23 offen")
    srd(A, 12, 16, SZ_MOD, WS_MOD)
    A("s_mov_b32 s25, 0xffff0000")
    A("s_waitcnt vmcnt(8)")
    for j in range(8):
        A(f"v_lshlrev_b32 v{8+j}, 16, v{8+j}")
        A(f"v_mul_f32 v{48+j}, {fl(-1.4426950408889634)}, v{8+j}")
        A(f"v_exp_f32 v{48+j}, v{48+j}")
    for j in range(8):
        A(f"v_add_f32 v{48+j}, 1.0, v{48+j}")
        A(f"v_rcp_f32 v{48+j}, v{48+j}")
    for j in range(8):
        A(f"v_mul_f32 v{8+j}, v{8+j}, v{48+j}")
        A(f"v_cvt_pk_bf16_f32 v{8+j}, v{8+j}, v{8+j}")
        A(f"v_and_b32 v{8+j}, s25, v{8+j}")
    for j in range(8):
        A(f"s_waitcnt vmcnt({7-j})")
        for q in range(4):
            A(f"v_lshlrev_b32 v56, 16, v{16+4*j+q}")
            A(f"v_and_b32 v57, s25, v{16+4*j+q}")
            if j == 0:
                A(f"v_mul_f32 v{48+2*q}, v56, v{8+j}")
                A(f"v_mul_f32 v{49+2*q}, v57, v{8+j}")
            else:
                A(f"v_fmac_f32 v{48+2*q}, v56, v{8+j}")
                A(f"v_fmac_f32 v{49+2*q}, v57, v{8+j}")
    for rot in (4, 8):
        for q in range(8):
            A(f"v_add_f32_dpp v{48+q}, v{48+q}, v{48+q} row_ror:{rot} row_mask:0xf bank_mask:0xf")
    A("""
    v_lshrrev_b32 v5, 4, v0
    v_lshlrev_b32 v5, 7, v5
    v_lshl_add_u32 v5, v1, 5, v5
    ds_write_b128 v5, v[48:51]
    ds_write_b128 v5, v[52:55] offset:16
    v_lshlrev_b32 v6, 2, v0
    s_waitcnt lgkmcnt(0)
    s_barrier
    v_cmp_gt_u32 vcc, 32, v0
    s_and_saveexec_b64 s[26:27], vcc
    s_cbranch_execz L_k1_end
    """)
    for k in range(8):
        A(f"ds_read2_b32 v[{16+2*k}:{17+2*k}], v6 offset0:{64*k} offset1:{64*k+32}") if 64*k+32 < 256 else \
            A(f"ds_read2_b32 v[{16+2*k}:{17+2*k}], v7 offset0:{64*(k-4)} offset1:{64*(k-4)+32}")
        if k == 0:
            A("v_add_u32 v7, 1024, v6")
    A("s_waitcnt lgkmcnt(0)")
    for k in (4, 2, 1):
        for q in range(k):
            A(f"v_pk_add_f32 v[{16+2*q}:{17+2*q}], v[{16+2*q}:{17+2*q}], v[{16+2*(q+k)}:{17+2*(q+k)}]")
    A(f"""
    v_add_f32 v16, v16, v17
    v_cvt_pk_bf16_f32 v16, v16, v16
    v_and_b32 v16, s25, v16
    s_lshr_b32 s23, s21, 4
    s_cmp_eq_u32 s23, 1
    s_cselect_b32 s24, 1.0, 0
    s_cmp_eq_u32 s23, 4
    s_cselect_b32 s24, 1.0, s24
    v_add_f32 v16, s24, v16
    v_cvt_pk_bf16_f32 v16, v16, v16
    v_and_b32 v16, s25, v16
    s_and_b32 s22, s21, 15
    s_lshl_b32 s22, s22, 5
    v_add_u32 v17, s22, v0                    ; d
    v_and_b32 v18, 7, v17
    v_lshlrev_b32 v18, 6, v18
    v_lshrrev_b32 v19, 7, v17
    v_lshl_add_u32 v18, v19, 4, v18
    v_bfe_u32 v19, v17, 3, 2
    v_lshl_add_u32 v18, v19, 2, v18
    v_bfe_u32 v20, v17, 5, 2
    v_add_u32 v18, v18, v20                   ; posA
    s_cmp_lt_u32 s23, 2
    s_cselect_b64 vcc, -1, 0
    v_cndmask_b32 v17, v17, v18, vcc
    {POSC}
    v_lshlrev_b32 v17, 2, v17
    s_lshl_b32 s22, s23, 11                   ; chunk*2048
    buffer_store_dword v16, v17, s[12:15], s22 offen
    s_endpgm
    """)
    A("L_k1_wpk:")
    A(f"""
    s_cmp_ge_u32 s2, {K1_GRID - K1_TP}
    s_cbranch_scc1 L_k1_fill
    s_load_dwordx4 s[4:7], s[0:1], {KA_WR}    ; w_r, w_i
    s_sub_u32 s20, s2, {K1_FFT + K1_MOD + K1_PF}
    s_and_b32 s21, s20, 31                    ; p
    s_lshr_b32 s22, s20, 5                    ; cls
    s_sub_u32 s23, 0, s21
    s_bitcmp1_b32 s22, 0
    s_cselect_b32 s23, s23, s21               ; +-p
    s_add_u32 s24, s22, 1
    s_lshr_b32 s24, s24, 1
    s_lshl_b32 s24, s24, 6
    s_add_u32 s23, s23, s24                   ; residue
    s_cmp_eq_u32 s20, 64
    s_cselect_b32 s23, 32, s23
    s_cmp_eq_u32 s20, 96
    s_cselect_b32 s23, 96, s23
    s_mul_i32 s23, s23, 514
    v_lshrrev_b32 v1, 4, v0                   ; j = 0..15
    v_and_b32 v2, 15, v0
    v_mul_u32_u24 v1, {128*514}, v1
    v_min_u32 v2, 8, v2
    v_lshl_add_u32 v1, v2, 6, v1
    s_waitcnt lgkmcnt(0)
    """)
    WSZ = 2048 * 514
    srd(A, 8, 4, WSZ)
    srd(A, 12, 6, WSZ)
    A("""
    buffer_load_ushort v4, v1, s[8:11], s23 offen
    buffer_load_ushort v5, v1, s[12:15], s23 offen
    s_waitcnt vmcnt(0)
    s_endpgm
    """)
    A("L_k1_fill:")
    A(f"""
    s_cmp_ge_u32 s2, {K1_GRID}
    s_cbranch_scc1 L_k1_end
    s_load_dwordx2 s[6:7], s[0:1], {KA_WS}
    s_sub_u32 s20, s2, {K1_GRID - K1_TP}
    s_lshl_b32 s20, s20, 16
    v_lshlrev_b32 v1, 4, v0
    v_mov_b32 v4, -1
    v_mov_b32 v5, -1
    v_mov_b32 v6, -1
    v_mov_b32 v7, -1
    s_waitcnt lgkmcnt(0)
    """)
    srd(A, 8, 6, SZ_X1 + SZ_HM, WS_X1)
    for k in range(16):
        A("buffer_store_dwordx4 v[4:7], v1, s[8:11], s20 offen")
        if k < 15: A("s_add_u32 s20, s20, 4096")
    A("s_endpgm")
    A("L_k1_pf:")
    A(f"""
    s_cmp_ge_u32 s2, {K1_FFT + K1_MOD + K1_PF}
    s_cbranch_scc1 L_k1_wpk
    s_getpc_b64 s[4:5]
    L_k1_pc:
    s_add_u32 s4, s4, {pf_start_label}-L_k1_pc
    s_addc_u32 s5, s5, 0
    v_lshlrev_b32 v1, 4, v0
    """)
    n = (pf_bytes + 4095) // 4096
    for i in range(n):
        A(f"global_load_dwordx4 v[4:7], v1, s[4:5]")
        if i + 1 < n:
            A("v_add_u32 v1, 0x1000, v1")
    A("s_waitcnt vmcnt(0)")
    A("L_k1_end:")
    A("s_endpgm")
    return descriptor(name, 208, 100, 208)
```

```python
WS_MOD  = 0x0
WS_CSB  = 0x4000
WS_FLG  = 0x10000
WS_ABUF = 0x20000
WS_WPK  = 0x220000
WS_CBUF = 0x440000
WS_WG1  = 0x660000
WS_WD   = 0x920000
WS_X1   = 0xAA0000
WS_HM   = 0xCA0000
WS_END  = 0x1220000
SZ_MOD = 0x3000
SZ_CSB = 88 * 256
SZ_FLG = 8192
SZ_ABUF = 32 * 32 * 2048
SZ_WPK = 131072
SZ_CBUF = 8 * 129 * 2048
SZ_WG1 = 88 * 32768
SZ_X1 = 2 << 20
SZ_WD = 8 * 44 * 4096
SZ_HM = 32 * 88 * 2048
_l = [(WS_MOD, SZ_MOD), (WS_CSB, SZ_CSB), (WS_ABUF, SZ_ABUF), (WS_WPK, SZ_WPK), (WS_CBUF, SZ_CBUF), (WS_WG1, SZ_WG1),
      (WS_WD, SZ_WD), (WS_X1, SZ_X1), (WS_HM, SZ_HM), (WS_END, 0)]
for (a_, n_), (b_, _) in zip(_l, _l[1:]):
    assert a_ + n_ <= b_, (hex(a_), hex(n_), hex(b_))
KA_X, KA_WR, KA_WI, KA_BX, KA_WG, KA_WU, KA_WDN, KA_C, KA_WMOD, KA_OUT, KA_DBG, KA_WS = [8 * i for i in range(12)]
```

```python
from asmlib import *
from layout import *

K1_FFT = 128
K1_MOD = 96
K1_WPK = 128
K1_TP = 120 if os.environ.get('SENT', '0') == '1' else 0
K1_PF = 8
K1_GRID = K1_FFT + K1_MOD + K1_WPK + K1_TP + K1_PF
K1_LDS = 4096 + 32 * 528

POSC = "" if os.environ.get('K3V', '7') != '4' else """
    v_and_b32 v20, 0x183, v17
    v_bfe_u32 v19, v17, 2, 1
    v_lshl_add_u32 v20, v19, 6, v20
    v_bfe_u32 v19, v17, 3, 4
    v_lshl_add_u32 v20, v19, 2, v20
    s_cmp_eq_u32 s23, 2
    s_cselect_b64 vcc, -1, 0
    v_cndmask_b32 v17, v17, v20, vcc
"""

XL3 = int(os.environ.get('K1_XL3', '4'))

def gen_k1(A, name, pf_start_label, pf_bytes):
    kernel_header(A, name)
    A(f"""
    s_getpc_b64 s[40:41]
    v_lshlrev_b32 v1, 5, v0
    global_load_dword v200, v1, s[40:41]
    s_cmp_ge_u32 s2, {K1_FFT}
    s_cbranch_scc1 L_k1_side
    s_load_dwordx2 s[4:5], s[0:1], {KA_X}
    s_load_dwordx2 s[6:7], s[0:1], {KA_WS}
    """)
    stamp(A, 'k1', 0)
    A("""
    s_and_b32 s20, s2, 31
    s_lshr_b32 s21, s2, 5
    v_and_b32 v1, 15, v0            ; m / n
    v_bfe_u32 v2, v0, 4, 2          ; g
    v_lshrrev_b32 v3, 6, v0         ; w
    v_lshlrev_b32 v4, 18, v2
    v_lshl_add_u32 v4, v3, 8, v4
    v_lshl_add_u32 v4, v1, 4, v4    ; g*256K + w*256 + m*16
    s_lshl_b32 s22, s20, 10
    s_waitcnt lgkmcnt(0)
    """)
    stamp(A, 'k1', 1)
    srd(A, 8, 4, 2097152)
    L = lambda kk, i: 16 + (kk * 8 + i) * 4
    def xload(q):
        A(f"""
        s_add_u32 s28, s21, {q}
        s_and_b32 s{30+q}, s28, 3
        s_lshr_b32 s29, s{30+q}, 1
        s_lshl_b32 s29, s29, 20
        s_and_b32 s28, s28, 1
        s_lshl_b32 s28, s28, 17
        s_add_u32 s28, s28, s29
        s_add_u32 s28, s28, s22
        """)
        for i in range(4):
            if i: A(f"s_add_u32 s28, s28, 32768")
            A(f"buffer_load_dwordx4 {v(16 + (q*4+i)*4, 4)}, v4, s[8:11], s28 offen")
    xload(0); xload(1)
    srd(A, 12, 6, SZ_ABUF, WS_ABUF)
    stamp(A, 'k1', 2)
    FC = lambda nt, c, kk: 128 + ((nt * 2 + c) * 2 + kk) * 4
    CS, SN = 160, 168
    A(f"""
    v_cvt_f32_u32 v5, v1
    v_mul_f32 v5, {fl(1/64)}, v5            ; n/64
    v_lshlrev_b32 v6, 3, v2
    v_cvt_f32_u32 v6, v6                     ; 8g
    v_mul_f32 v6, v5, v6                     ; n*8g/64
    """)
    for i in range(8):
        if i % 4 == 0:
            q = i // 4
            A(f"""
            s_lshr_b32 s28, s{30+q}, 1
            s_lshl_b32 s28, s28, 5
            s_and_b32 s29, s{30+q}, 1
            s_lshl_b32 s29, s29, 2
            s_add_u32 s28, s28, s29
            v_cvt_f32_u32 v7, s28
            v_fma_f32 v7, v7, v5, v6
            """)
        else:
            A(f"v_add_f32 v7, v7, v5")
        A(f"v_cos_f32 v{CS+i}, v7")
        A(f"v_sin_f32 v{SN+i}, v7")
    def term(kind, i):
        c_, s_ = f"v{CS+i}", f"v{SN+i}"
        return {'c': c_, '-c': '-' + c_, 's': s_, '-s': '-' + s_}[kind]
    tab = {(0, 0): ['c'] * 4, (0, 1): ['-s'] * 4,
           (1, 0): ['c', '-s', '-c', 's'], (1, 1): ['-s', '-c', 's', 'c']}
    for nt in range(2):
        for c in range(2):
            for d in range(4):
                i0, i1 = 2 * d, 2 * d + 1
                A(f"v_cvt_pk_bf16_f32 v{FC(nt,c,0)+d}, {term(tab[(nt,c)][i0%4], i0)}, {term(tab[(nt,c)][i1%4], i1)}")
    A("""
    v_cmp_eq_u32 vcc, 0, v1
    v_mov_b32 v8, 0xbf803f80
    v_and_b32 v9, 1, v1
    v_sub_u32 v9, 0, v9
    v_and_b32 v9, 0x80008000, v9
    """)
    for d in range(4):
        A(f"v_cndmask_b32 v{FC(0,1,0)+d}, v{FC(0,1,0)+d}, v8, vcc")
    for nt in range(2):
        for c in range(2):
            for d in range(4):
                A(f"v_xor_b32 v{FC(nt,c,1)+d}, v9, v{FC(nt,c,0)+d}")
    S0, Q0 = 80, 96
    for k in range(16):
        A(f"v_mov_b64 v[{S0+2*k}:{S0+2*k+1}], 0")
    A("s_mov_b32 s24, 0x3f803f80")
    A("s_mov_b32 s25, 0xffff0000")
    A("""
    v_bfe_u32 v10, v0, 3, 1                 ; b3 = stat
    v_bfe_u32 v11, v0, 2, 1                 ; b2 = kk
    v_lshlrev_b32 v10, 8, v10
    v_lshl_add_u32 v10, v3, 9, v10          ; w*512 + st*256
    v_lshl_add_u32 v10, v11, 7, v10         ; + kk*128
    v_lshl_add_u32 v10, v2, 5, v10
    v_and_b32 v11, 63, v0
    v_lshlrev_b32 v11, 2, v11
    v_lshl_add_u32 v12, v3, 9, v11
    v_lshlrev_b32 v13, 9, v3
    v_lshl_add_u32 v13, v2, 5, v13
    v_mul_u32_u24 v14, 528, v1
    v_lshl_add_u32 v15, v3, 2, v2
    v_lshl_add_u32 v14, v15, 4, v14
    v_bfe_u32 v112, v0, 5, 1
    v_lshl_add_u32 v112, v3, 3, v112        ; row (k = 0)
    v_and_b32 v113, 31, v0
    v_mul_u32_u24 v15, 528, v112
    v_lshl_add_u32 v15, v113, 4, v15
    v_lshlrev_b32 v112, 16, v112
    v_lshl_add_u32 v112, v113, 4, v112
    s_lshl_b32 s26, s20, 11
    s_lshl_b32 s27, s21, 9
    s_add_u32 s26, s26, s27                 ; s2*2048 + p*512
    s_add_u32 s27, s26, 0x100000
    """)
    stamp(A, 'k1', 3)
    r1a = lambda k: f"v_add_f32_dpp v{S0+k}, v{S0+k}, v{S0+k} row_ror:8 row_mask:0xf bank_mask:0x3"
    r1b = lambda k: f"v_add_f32_dpp v{S0+k}, v{Q0+k}, v{Q0+k} row_ror:8 row_mask:0xf bank_mask:0xc"
    r2a = lambda k: f"v_add_f32_dpp v{S0+k}, v{S0+k}, v{S0+k} row_shl:4 row_mask:0xf bank_mask:0x5"
    r2b = lambda k: f"v_add_f32_dpp v{S0+k}, v{S0+8+k}, v{S0+8+k} row_shr:4 row_mask:0xf bank_mask:0xa"
    r3 = lambda k: f"v_add_f32_dpp v{S0+k}, v{S0+k}, v{S0+k} quad_perm:[1,0,3,2] row_mask:0xf bank_mask:0xf"
    r4 = lambda k: f"v_add_f32_dpp v{S0+k}, v{S0+k}, v{S0+k} quad_perm:[2,3,0,1] row_mask:0xf bank_mask:0xf"
    def lagged(k):
        o = []
        if 0 <= k - 1 < 16: o.append(r1a(k - 1))
        if 0 <= k - 2 < 16: o.append(r1b(k - 2))
        if 0 <= k - 3 < 8: o.append(r2a(k - 3))
        if 0 <= k - 11 < 8: o.append(r2b(k - 11))
        if 0 <= k - 12 < 8: o.append(r3(k - 12))
        if 0 <= k - 13 < 8: o.append(r4(k - 13))
        return o
    for k in range(21):
        if k < 16:
            if k == 0: xload(2)
            if k == XL3: xload(3)
            if k == 1: stamp(A, 'k1', 4)
            for j_ in range(4):
                A(f"v_dot2c_f32_bf16 v{S0+k}, s24, v{16+4*k+j_}")
                A(f"v_dot2c_f32_bf16 v{Q0+k}, v{16+4*k+j_}, v{16+4*k+j_}")
        A.ext(lagged(k))
    stamp(A, 'k1', 5)
    A(f"ds_write_b128 v10, v[{S0}:{S0+3}]")
    A(f"ds_write_b128 v10, v[{S0+4}:{S0+7}] offset:16")
    A("""
    s_waitcnt lgkmcnt(0)
    s_barrier
    ds_read2st64_b32 v[96:97], v11 offset0:0 offset1:1
    ds_read2st64_b32 v[98:99], v11 offset0:2 offset1:3
    ds_read2st64_b32 v[100:101], v11 offset0:4 offset1:5
    ds_read2st64_b32 v[102:103], v11 offset0:6 offset1:7
    """)
    T = lambda e, k: 176 + e * 16 + k
    for p in range(4):
        if p < 3:
            A(f"s_cmp_lg_u32 s21, {p}")
            A(f"s_cbranch_scc1 L_k1_p{p+1}")
        for k in range(16):
            A(f"v_lshlrev_b32 v{T(0,k)}, 16, v{16+4*k+p}")
            A(f"v_and_b32 v{T(1,k)}, s25, v{16+4*k+p}")
        if p < 3:
            A("s_branch L_k1_pdone")
            A(f"L_k1_p{p+1}:")
    A("L_k1_pdone:")
    stamp(A, 'k1', 6)
    A("""
    s_waitcnt lgkmcnt(0)
    v_pk_add_f32 v[96:97], v[96:97], v[98:99]
    v_pk_add_f32 v[100:101], v[100:101], v[102:103]
    v_pk_add_f32 v[96:97], v[96:97], v[100:101]
    """)
    A(f"""
    v_mul_f32 v96, {fl(1/512)}, v96          ; mean
    v_mul_f32 v97, {fl(1/512)}, v97          ; E[x^2]
    v_fma_f32 v97, -v96, v96, v97
    v_max_f32 v97, 0, v97
    v_add_f32 v97, {fl(1e-5)}, v97
    v_rsq_f32 v97, v97
    v_mul_f32 v96, -1.0, v96
    v_mul_f32 v96, v96, v97                  ; -mean*rstd
    ds_write2st64_b32 v12, v97, v96 offset0:8 offset1:9
    s_waitcnt lgkmcnt(0)
    """)
    for kk in range(2):
        for h in range(2):
            A(f"ds_read_b128 v[{80+kk*8+h*4}:{80+kk*8+h*4+3}], v13 offset:{2048 + kk*128 + h*16}")
            A(f"ds_read_b128 v[{96+kk*8+h*4}:{96+kk*8+h*4+3}], v13 offset:{2048 + 256 + kk*128 + h*16}")
    stamp(A, 'k1', 7)
    DF = lambda e, kk: 16 + (e * 2 + kk) * 4
    ACC = lambda e, nt, c: 32 + ((e * 2 + nt) * 2 + c) * 4
    for kk in range(2):
        A(f"s_waitcnt lgkmcnt({4 if kk == 0 else 0})")
        for e in range(2):
            for d in range(4):
                k = kk * 8 + 2 * d
                A(f"v_pk_fma_f32 v[{T(e,k)}:{T(e,k)+1}], v[{T(e,k)}:{T(e,k)+1}], v[{80+k}:{81+k}], v[{96+k}:{97+k}]")
    P = []
    for e in range(2):
        for kk in range(2):
            for d in range(4):
                k = kk * 8 + 2 * d
                P.append(f"v_cvt_pk_bf16_f32 v{DF(e,kk)+d}, v{T(e,k)}, v{T(e,k)+1}")
        for nt in range(2):
            for kk in range(2):
                for c in range(2):
                    cin = "0" if kk == 0 else v(ACC(e, nt, c), 4)
                    P.append(f"v_mfma_f32_16x16x32_bf16 {v(ACC(e,nt,c),4)}, {v(DF(e,kk),4)}, {v(FC(nt,c,kk),4)}, {cin}")
    for e in range(2):
        for nt in range(2):
            o = 64 + (e * 2 + nt) * 4
            for r in range(4):
                P.append(f"v_cvt_pk_bf16_f32 v{o+r}, v{ACC(e,nt,0)+r}, v{ACC(e,nt,1)+r}")
            P.append(f"ds_write_b128 v14, {v(o,4)} offset:{4096 + nt*16*528 + e*256}")
    A.ext(schedule(P))
    A("s_waitcnt lgkmcnt(0)")
    A("s_barrier")
    for k in range(4):
        A(f"ds_read_b128 {v(64+4*k,4)}, v15 offset:{4096 + k*2*528}")
    for k in range(4):
        A(f"s_waitcnt lgkmcnt({3-k})")
        A(f"buffer_store_dwordx4 {v(64+4*k,4)}, v112, s[12:15], s26 offen")
        if k < 3: A("s_add_u32 s26, s26, 0x20000")
    stamp(A, 'k1', 8)
    dump_stamps(A, 'k1', 9, 6, 4, vt=2)
    A("s_endpgm")

    A("L_k1_side:")
    A(f"""
    s_cmp_ge_u32 s2, {K1_FFT + K1_MOD}
    s_cbranch_scc1 L_k1_pf
    s_load_dwordx4 s[4:7], s[0:1], {KA_C}     ; c, w_mod
    s_load_dwordx2 s[16:17], s[0:1], {KA_WS}
    s_sub_u32 s20, s2, {K1_FFT}
    s_and_b32 s21, s20, 7
    s_lshr_b32 s22, s20, 4
    s_lshl_b32 s22, s22, 3
    s_add_u32 s21, s21, s22
    s_lshl_b32 s21, s21, 1
    s_bfe_u32 s22, s20, 0x10003
    s_add_u32 s21, s21, s22                   ; cg 0..95
    v_and_b32 v1, 3, v0                       ; cq
    v_lshrrev_b32 v2, 2, v0                   ; rg 0..63
    v_mul_u32_u24 v3, 6144, v2
    v_lshl_add_u32 v3, v1, 4, v3
    v_lshlrev_b32 v4, 1, v2
    s_lshl_b32 s22, s21, 6
    s_waitcnt lgkmcnt(0)
    """)
    srd(A, 8, 6, 512 * 6144)
    srd(A, 12, 4, 1024)
    for j in range(8):
        A(f"buffer_load_ushort v{8+j}, v4, s[12:15], 0 offen offset:{j*128}")
    for j in range(8):
        A(f"s_add_u32 s23, s22, {j * 64 * 6144}")
        A(f"buffer_load_dwordx4 {v(16+4*j,4)}, v3, s[8:11], s23 offen")
    srd(A, 12, 16, SZ_MOD, WS_MOD)
    A("s_mov_b32 s25, 0xffff0000")
    A("s_waitcnt vmcnt(8)")
    for j in range(8):
        A(f"v_lshlrev_b32 v{8+j}, 16, v{8+j}")
        A(f"v_mul_f32 v{48+j}, {fl(-1.4426950408889634)}, v{8+j}")
        A(f"v_exp_f32 v{48+j}, v{48+j}")
    for j in range(8):
        A(f"v_add_f32 v{48+j}, 1.0, v{48+j}")
        A(f"v_rcp_f32 v{48+j}, v{48+j}")
    for j in range(8):
        A(f"v_mul_f32 v{8+j}, v{8+j}, v{48+j}")
        A(f"v_cvt_pk_bf16_f32 v{8+j}, v{8+j}, v{8+j}")
        A(f"v_and_b32 v{8+j}, s25, v{8+j}")
    for j in range(8):
        A(f"s_waitcnt vmcnt({7-j})")
        for q in range(4):
            A(f"v_lshlrev_b32 v56, 16, v{16+4*j+q}")
            A(f"v_and_b32 v57, s25, v{16+4*j+q}")
            if j == 0:
                A(f"v_mul_f32 v{48+2*q}, v56, v{8+j}")
                A(f"v_mul_f32 v{49+2*q}, v57, v{8+j}")
            else:
                A(f"v_fmac_f32 v{48+2*q}, v56, v{8+j}")
                A(f"v_fmac_f32 v{49+2*q}, v57, v{8+j}")
    for rot in (4, 8):
        for q in range(8):
            A(f"v_add_f32_dpp v{48+q}, v{48+q}, v{48+q} row_ror:{rot} row_mask:0xf bank_mask:0xf")
    A("""
    v_lshrrev_b32 v5, 4, v0
    v_lshlrev_b32 v5, 7, v5
    v_lshl_add_u32 v5, v1, 5, v5
    ds_write_b128 v5, v[48:51]
    ds_write_b128 v5, v[52:55] offset:16
    v_lshlrev_b32 v6, 2, v0
    s_waitcnt lgkmcnt(0)
    s_barrier
    v_cmp_gt_u32 vcc, 32, v0
    s_and_saveexec_b64 s[26:27], vcc
    s_cbranch_execz L_k1_end
    """)
    for k in range(8):
        A(f"ds_read2_b32 v[{16+2*k}:{17+2*k}], v6 offset0:{64*k} offset1:{64*k+32}") if 64*k+32 < 256 else \
            A(f"ds_read2_b32 v[{16+2*k}:{17+2*k}], v7 offset0:{64*(k-4)} offset1:{64*(k-4)+32}")
        if k == 0:
            A("v_add_u32 v7, 1024, v6")
    A("s_waitcnt lgkmcnt(0)")
    for k in (4, 2, 1):
        for q in range(k):
            A(f"v_pk_add_f32 v[{16+2*q}:{17+2*q}], v[{16+2*q}:{17+2*q}], v[{16+2*(q+k)}:{17+2*(q+k)}]")
    A(f"""
    v_add_f32 v16, v16, v17
    v_cvt_pk_bf16_f32 v16, v16, v16
    v_and_b32 v16, s25, v16
    s_lshr_b32 s23, s21, 4
    s_cmp_eq_u32 s23, 1
    s_cselect_b32 s24, 1.0, 0
    s_cmp_eq_u32 s23, 4
    s_cselect_b32 s24, 1.0, s24
    v_add_f32 v16, s24, v16
    v_cvt_pk_bf16_f32 v16, v16, v16
    v_and_b32 v16, s25, v16
    s_and_b32 s22, s21, 15
    s_lshl_b32 s22, s22, 5
    v_add_u32 v17, s22, v0                    ; d
    v_and_b32 v18, 7, v17
    v_lshlrev_b32 v18, 6, v18
    v_lshrrev_b32 v19, 7, v17
    v_lshl_add_u32 v18, v19, 4, v18
    v_bfe_u32 v19, v17, 3, 2
    v_lshl_add_u32 v18, v19, 2, v18
    v_bfe_u32 v20, v17, 5, 2
    v_add_u32 v18, v18, v20                   ; posA
    s_cmp_lt_u32 s23, 2
    s_cselect_b64 vcc, -1, 0
    v_cndmask_b32 v17, v17, v18, vcc
    {POSC}
    v_lshlrev_b32 v17, 2, v17
    s_lshl_b32 s22, s23, 11                   ; chunk*2048
    buffer_store_dword v16, v17, s[12:15], s22 offen
    s_endpgm
    """)
    A("L_k1_wpk:")
    A(f"""
    s_cmp_ge_u32 s2, {K1_GRID - K1_TP}
    s_cbranch_scc1 L_k1_fill
    s_load_dwordx4 s[4:7], s[0:1], {KA_WR}    ; w_r, w_i
    s_sub_u32 s20, s2, {K1_FFT + K1_MOD + K1_PF}
    s_and_b32 s21, s20, 31                    ; p
    s_lshr_b32 s22, s20, 5                    ; cls
    s_sub_u32 s23, 0, s21
    s_bitcmp1_b32 s22, 0
    s_cselect_b32 s23, s23, s21               ; +-p
    s_add_u32 s24, s22, 1
    s_lshr_b32 s24, s24, 1
    s_lshl_b32 s24, s24, 6
    s_add_u32 s23, s23, s24                   ; residue
    s_cmp_eq_u32 s20, 64
    s_cselect_b32 s23, 32, s23
    s_cmp_eq_u32 s20, 96
    s_cselect_b32 s23, 96, s23
    s_mul_i32 s23, s23, 514
    v_lshrrev_b32 v1, 4, v0                   ; j = 0..15
    v_and_b32 v2, 15, v0
    v_mul_u32_u24 v1, {128*514}, v1
    v_min_u32 v2, 8, v2
    v_lshl_add_u32 v1, v2, 6, v1
    s_waitcnt lgkmcnt(0)
    """)
    WSZ = 2048 * 514
    srd(A, 8, 4, WSZ)
    srd(A, 12, 6, WSZ)
    A("""
    buffer_load_ushort v4, v1, s[8:11], s23 offen
    buffer_load_ushort v5, v1, s[12:15], s23 offen
    s_waitcnt vmcnt(0)
    s_endpgm
    """)
    A("L_k1_fill:")
    A(f"""
    s_cmp_ge_u32 s2, {K1_GRID}
    s_cbranch_scc1 L_k1_end
    s_load_dwordx2 s[6:7], s[0:1], {KA_WS}
    s_sub_u32 s20, s2, {K1_GRID - K1_TP}
    s_lshl_b32 s20, s20, 16
    v_lshlrev_b32 v1, 4, v0
    v_mov_b32 v4, -1
    v_mov_b32 v5, -1
    v_mov_b32 v6, -1
    v_mov_b32 v7, -1
    s_waitcnt lgkmcnt(0)
    """)
    srd(A, 8, 6, SZ_X1 + SZ_HM, WS_X1)
    for k in range(16):
        A("buffer_store_dwordx4 v[4:7], v1, s[8:11], s20 offen")
        if k < 15: A("s_add_u32 s20, s20, 4096")
    A("s_endpgm")
    A("L_k1_pf:")
    A(f"""
    s_cmp_ge_u32 s2, {K1_FFT + K1_MOD + K1_PF}
    s_cbranch_scc1 L_k1_wpk
    s_getpc_b64 s[4:5]
    L_k1_pc:
    s_add_u32 s4, s4, {pf_start_label}-L_k1_pc
    s_addc_u32 s5, s5, 0
    v_lshlrev_b32 v1, 4, v0
    """)
    n = (pf_bytes + 4095) // 4096
    for i in range(n):
        A(f"global_load_dwordx4 v[4:7], v1, s[4:5]")
        if i + 1 < n:
            A("v_add_u32 v1, 0x1000, v1")
    A("s_waitcnt vmcnt(0)")
    A("L_k1_end:")
    A("s_endpgm")
    return descriptor(name, 208, 100, 208)
```

```python
from asmlib import *
from layout import *

K1_FFT = 128
K1_MOD = 96
K1_WPK = 128
K1_TP = 0
K1_PF = 8
K1_GRID = K1_FFT + K1_MOD + K1_WPK + K1_TP + K1_PF
K1_LDS = 4096 + 32 * 528

POSC = "" if os.environ.get('K3V', '7') != '4' else """
    v_and_b32 v20, 0x183, v17
    v_bfe_u32 v19, v17, 2, 1
    v_lshl_add_u32 v20, v19, 6, v20
    v_bfe_u32 v19, v17, 3, 4
    v_lshl_add_u32 v20, v19, 2, v20
    s_cmp_eq_u32 s23, 2
    s_cselect_b64 vcc, -1, 0
    v_cndmask_b32 v17, v17, v20, vcc
"""

XL3 = int(os.environ.get('K1_XL3', '4'))

def gen_k1(A, name, pf_start_label, pf_bytes):
    kernel_header(A, name)
    A(f"""
    s_getpc_b64 s[40:41]
    v_lshlrev_b32 v1, 5, v0
    global_load_dword v200, v1, s[40:41]
    s_cmp_ge_u32 s2, {K1_FFT}
    s_cbranch_scc1 L_k1_side
    s_load_dwordx2 s[4:5], s[0:1], {KA_X}
    s_load_dwordx2 s[6:7], s[0:1], {KA_WS}
    """)
    stamp(A, 'k1', 0)
    A("""
    s_and_b32 s20, s2, 31
    s_lshr_b32 s21, s2, 5
    v_and_b32 v1, 15, v0            ; m / n
    v_bfe_u32 v2, v0, 4, 2          ; g
    v_lshrrev_b32 v3, 6, v0         ; w
    v_lshlrev_b32 v4, 18, v2
    v_lshl_add_u32 v4, v3, 8, v4
    v_lshl_add_u32 v4, v1, 4, v4    ; g*256K + w*256 + m*16
    s_lshl_b32 s22, s20, 10
    s_waitcnt lgkmcnt(0)
    """)
    stamp(A, 'k1', 1)
    srd(A, 8, 4, 2097152)
    L = lambda kk, i: 16 + (kk * 8 + i) * 4
    def xload(q):
        A(f"""
        s_add_u32 s28, s21, {q}
        s_and_b32 s{30+q}, s28, 3
        s_lshr_b32 s29, s{30+q}, 1
        s_lshl_b32 s29, s29, 20
        s_and_b32 s28, s28, 1
        s_lshl_b32 s28, s28, 17
        s_add_u32 s28, s28, s29
        s_add_u32 s28, s28, s22
        """)
        for i in range(4):
            if i: A(f"s_add_u32 s28, s28, 32768")
            A(f"buffer_load_dwordx4 {v(16 + (q*4+i)*4, 4)}, v4, s[8:11], s28 offen")
    xload(0); xload(1)
    srd(A, 12, 6, SZ_ABUF, WS_ABUF)
    stamp(A, 'k1', 2)
    FC = lambda nt, c, kk: 128 + ((nt * 2 + c) * 2 + kk) * 4
    CS, SN = 160, 168
    A(f"""
    v_cvt_f32_u32 v5, v1
    v_mul_f32 v5, {fl(1/64)}, v5            ; n/64
    v_lshlrev_b32 v6, 3, v2
    v_cvt_f32_u32 v6, v6                     ; 8g
    v_mul_f32 v6, v5, v6                     ; n*8g/64
    """)
    for i in range(8):
        if i % 4 == 0:
            q = i // 4
            A(f"""
            s_lshr_b32 s28, s{30+q}, 1
            s_lshl_b32 s28, s28, 5
            s_and_b32 s29, s{30+q}, 1
            s_lshl_b32 s29, s29, 2
            s_add_u32 s28, s28, s29
            v_cvt_f32_u32 v7, s28
            v_fma_f32 v7, v7, v5, v6
            """)
        else:
            A(f"v_add_f32 v7, v7, v5")
        A(f"v_cos_f32 v{CS+i}, v7")
        A(f"v_sin_f32 v{SN+i}, v7")
    def term(kind, i):
        c_, s_ = f"v{CS+i}", f"v{SN+i}"
        return {'c': c_, '-c': '-' + c_, 's': s_, '-s': '-' + s_}[kind]
    tab = {(0, 0): ['c'] * 4, (0, 1): ['-s'] * 4,
           (1, 0): ['c', '-s', '-c', 's'], (1, 1): ['-s', '-c', 's', 'c']}
    for nt in range(2):
        for c in range(2):
            for d in range(4):
                i0, i1 = 2 * d, 2 * d + 1
                A(f"v_cvt_pk_bf16_f32 v{FC(nt,c,0)+d}, {term(tab[(nt,c)][i0%4], i0)}, {term(tab[(nt,c)][i1%4], i1)}")
    A("""
    v_cmp_eq_u32 vcc, 0, v1
    v_mov_b32 v8, 0xbf803f80
    v_and_b32 v9, 1, v1
    v_sub_u32 v9, 0, v9
    v_and_b32 v9, 0x80008000, v9
    """)
    for d in range(4):
        A(f"v_cndmask_b32 v{FC(0,1,0)+d}, v{FC(0,1,0)+d}, v8, vcc")
    for nt in range(2):
        for c in range(2):
            for d in range(4):
                A(f"v_xor_b32 v{FC(nt,c,1)+d}, v9, v{FC(nt,c,0)+d}")
    S0, Q0 = 80, 96
    for k in range(16):
        A(f"v_mov_b64 v[{S0+2*k}:{S0+2*k+1}], 0")
    A("s_mov_b32 s24, 0x3f803f80")
    A("s_mov_b32 s25, 0xffff0000")
    A("""
    v_bfe_u32 v10, v0, 3, 1                 ; b3 = stat
    v_bfe_u32 v11, v0, 2, 1                 ; b2 = kk
    v_lshlrev_b32 v10, 8, v10
    v_lshl_add_u32 v10, v3, 9, v10          ; w*512 + st*256
    v_lshl_add_u32 v10, v11, 7, v10         ; + kk*128
    v_lshl_add_u32 v10, v2, 5, v10
    v_and_b32 v11, 63, v0
    v_lshlrev_b32 v11, 2, v11
    v_lshl_add_u32 v12, v3, 9, v11
    v_lshlrev_b32 v13, 9, v3
    v_lshl_add_u32 v13, v2, 5, v13
    v_mul_u32_u24 v14, 528, v1
    v_lshl_add_u32 v15, v3, 2, v2
    v_lshl_add_u32 v14, v15, 4, v14
    v_bfe_u32 v112, v0, 5, 1
    v_lshl_add_u32 v112, v3, 3, v112        ; row (k = 0)
    v_and_b32 v113, 31, v0
    v_mul_u32_u24 v15, 528, v112
    v_lshl_add_u32 v15, v113, 4, v15
    v_lshlrev_b32 v112, 16, v112
    v_lshl_add_u32 v112, v113, 4, v112
    s_lshl_b32 s26, s20, 11
    s_lshl_b32 s27, s21, 9
    s_add_u32 s26, s26, s27                 ; s2*2048 + p*512
    s_add_u32 s27, s26, 0x100000
    """)
    stamp(A, 'k1', 3)
    r1a = lambda k: f"v_add_f32_dpp v{S0+k}, v{S0+k}, v{S0+k} row_ror:8 row_mask:0xf bank_mask:0x3"
    r1b = lambda k: f"v_add_f32_dpp v{S0+k}, v{Q0+k}, v{Q0+k} row_ror:8 row_mask:0xf bank_mask:0xc"
    r2a = lambda k: f"v_add_f32_dpp v{S0+k}, v{S0+k}, v{S0+k} row_shl:4 row_mask:0xf bank_mask:0x5"
    r2b = lambda k: f"v_add_f32_dpp v{S0+k}, v{S0+8+k}, v{S0+8+k} row_shr:4 row_mask:0xf bank_mask:0xa"
    r3 = lambda k: f"v_add_f32_dpp v{S0+k}, v{S0+k}, v{S0+k} quad_perm:[1,0,3,2] row_mask:0xf bank_mask:0xf"
    r4 = lambda k: f"v_add_f32_dpp v{S0+k}, v{S0+k}, v{S0+k} quad_perm:[2,3,0,1] row_mask:0xf bank_mask:0xf"
    def lagged(k):
        o = []
        if 0 <= k - 1 < 16: o.append(r1a(k - 1))
        if 0 <= k - 2 < 16: o.append(r1b(k - 2))
        if 0 <= k - 3 < 8: o.append(r2a(k - 3))
        if 0 <= k - 11 < 8: o.append(r2b(k - 11))
        if 0 <= k - 12 < 8: o.append(r3(k - 12))
        if 0 <= k - 13 < 8: o.append(r4(k - 13))
        return o
    for k in range(21):
        if k < 16:
            if k == 0: xload(2)
            if k == XL3: xload(3)
            if k == 1: stamp(A, 'k1', 4)
            for j_ in range(4):
                A(f"v_dot2c_f32_bf16 v{S0+k}, s24, v{16+4*k+j_}")
                A(f"v_dot2c_f32_bf16 v{Q0+k}, v{16+4*k+j_}, v{16+4*k+j_}")
        A.ext(lagged(k))
    stamp(A, 'k1', 5)
    A(f"ds_write_b128 v10, v[{S0}:{S0+3}]")
    A(f"ds_write_b128 v10, v[{S0+4}:{S0+7}] offset:16")
    A("""
    s_waitcnt lgkmcnt(0)
    s_barrier
    ds_read2st64_b32 v[96:97], v11 offset0:0 offset1:1
    ds_read2st64_b32 v[98:99], v11 offset0:2 offset1:3
    ds_read2st64_b32 v[100:101], v11 offset0:4 offset1:5
    ds_read2st64_b32 v[102:103], v11 offset0:6 offset1:7
    """)
    T = lambda e, k: 176 + e * 16 + k
    for p in range(4):
        if p < 3:
            A(f"s_cmp_lg_u32 s21, {p}")
            A(f"s_cbranch_scc1 L_k1_p{p+1}")
        for k in range(16):
            A(f"v_lshlrev_b32 v{T(0,k)}, 16, v{16+4*k+p}")
            A(f"v_and_b32 v{T(1,k)}, s25, v{16+4*k+p}")
        if p < 3:
            A("s_branch L_k1_pdone")
            A(f"L_k1_p{p+1}:")
    A("L_k1_pdone:")
    stamp(A, 'k1', 6)
    A("""
    s_waitcnt lgkmcnt(0)
    v_pk_add_f32 v[96:97], v[96:97], v[98:99]
    v_pk_add_f32 v[100:101], v[100:101], v[102:103]
    v_pk_add_f32 v[96:97], v[96:97], v[100:101]
    """)
    A(f"""
    v_mul_f32 v96, {fl(1/512)}, v96          ; mean
    v_mul_f32 v97, {fl(1/512)}, v97          ; E[x^2]
    v_fma_f32 v97, -v96, v96, v97
    v_max_f32 v97, 0, v97
    v_add_f32 v97, {fl(1e-5)}, v97
    v_rsq_f32 v97, v97
    v_mul_f32 v96, -1.0, v96
    v_mul_f32 v96, v96, v97                  ; -mean*rstd
    ds_write2st64_b32 v12, v97, v96 offset0:8 offset1:9
    s_waitcnt lgkmcnt(0)
    """)
    for kk in range(2):
        for h in range(2):
            A(f"ds_read_b128 v[{80+kk*8+h*4}:{80+kk*8+h*4+3}], v13 offset:{2048 + kk*128 + h*16}")
            A(f"ds_read_b128 v[{96+kk*8+h*4}:{96+kk*8+h*4+3}], v13 offset:{2048 + 256 + kk*128 + h*16}")
    stamp(A, 'k1', 7)
    DF = lambda e, kk: 16 + (e * 2 + kk) * 4
    ACC = lambda e, nt, c: 32 + ((e * 2 + nt) * 2 + c) * 4
    for kk in range(2):
        A(f"s_waitcnt lgkmcnt({4 if kk == 0 else 0})")
        for e in range(2):
            for d in range(4):
                k = kk * 8 + 2 * d
                A(f"v_pk_fma_f32 v[{T(e,k)}:{T(e,k)+1}], v[{T(e,k)}:{T(e,k)+1}], v[{80+k}:{81+k}], v[{96+k}:{97+k}]")
    P = []
    for e in range(2):
        for kk in range(2):
            for d in range(4):
                k = kk * 8 + 2 * d
                P.append(f"v_cvt_pk_bf16_f32 v{DF(e,kk)+d}, v{T(e,k)}, v{T(e,k)+1}")
        for nt in range(2):
            for kk in range(2):
                for c in range(2):
                    cin = "0" if kk == 0 else v(ACC(e, nt, c), 4)
                    P.append(f"v_mfma_f32_16x16x32_bf16 {v(ACC(e,nt,c),4)}, {v(DF(e,kk),4)}, {v(FC(nt,c,kk),4)}, {cin}")
    for e in range(2):
        for nt in range(2):
            o = 64 + (e * 2 + nt) * 4
            for r in range(4):
                P.append(f"v_cvt_pk_bf16_f32 v{o+r}, v{ACC(e,nt,0)+r}, v{ACC(e,nt,1)+r}")
            P.append(f"ds_write_b128 v14, {v(o,4)} offset:{4096 + nt*16*528 + e*256}")
    A.ext(schedule(P))
    A("s_waitcnt lgkmcnt(0)")
    A("s_barrier")
    for k in range(4):
        A(f"ds_read_b128 {v(64+4*k,4)}, v15 offset:{4096 + k*2*528}")
    for k in range(4):
        A(f"s_waitcnt lgkmcnt({3-k})")
        A(f"buffer_store_dwordx4 {v(64+4*k,4)}, v112, s[12:15], s26 offen")
        if k < 3: A("s_add_u32 s26, s26, 0x20000")
    stamp(A, 'k1', 8)
    dump_stamps(A, 'k1', 9, 6, 4, vt=2)
    A("s_endpgm")

    A("L_k1_side:")
    A(f"""
    s_cmp_ge_u32 s2, {K1_FFT + K1_MOD}
    s_cbranch_scc1 L_k1_pf
    s_load_dwordx4 s[4:7], s[0:1], {KA_C}     ; c, w_mod
    s_load_dwordx2 s[16:17], s[0:1], {KA_WS}
    s_sub_u32 s20, s2, {K1_FFT}
    s_and_b32 s21, s20, 7
    s_lshr_b32 s22, s20, 4
    s_lshl_b32 s22, s22, 3
    s_add_u32 s21, s21, s22
    s_lshl_b32 s21, s21, 1
    s_bfe_u32 s22, s20, 0x10003
    s_add_u32 s21, s21, s22                   ; cg 0..95
    v_and_b32 v1, 3, v0                       ; cq
    v_lshrrev_b32 v2, 2, v0                   ; rg 0..63
    v_mul_u32_u24 v3, 6144, v2
    v_lshl_add_u32 v3, v1, 4, v3
    v_lshlrev_b32 v4, 1, v2
    s_lshl_b32 s22, s21, 6
    s_waitcnt lgkmcnt(0)
    """)
    srd(A, 8, 6, 512 * 6144)
    srd(A, 12, 4, 1024)
    for j in range(8):
        A(f"buffer_load_ushort v{8+j}, v4, s[12:15], 0 offen offset:{j*128}")
    for j in range(8):
        A(f"s_add_u32 s23, s22, {j * 64 * 6144}")
        A(f"buffer_load_dwordx4 {v(16+4*j,4)}, v3, s[8:11], s23 offen")
    srd(A, 12, 16, SZ_MOD, WS_MOD)
    A("s_mov_b32 s25, 0xffff0000")
    A("s_waitcnt vmcnt(8)")
    for j in range(8):
        A(f"v_lshlrev_b32 v{8+j}, 16, v{8+j}")
        A(f"v_mul_f32 v{48+j}, {fl(-1.4426950408889634)}, v{8+j}")
        A(f"v_exp_f32 v{48+j}, v{48+j}")
    for j in range(8):
        A(f"v_add_f32 v{48+j}, 1.0, v{48+j}")
        A(f"v_rcp_f32 v{48+j}, v{48+j}")
    for j in range(8):
        A(f"v_mul_f32 v{8+j}, v{8+j}, v{48+j}")
        A(f"v_cvt_pk_bf16_f32 v{8+j}, v{8+j}, v{8+j}")
        A(f"v_and_b32 v{8+j}, s25, v{8+j}")
    for j in range(8):
        A(f"s_waitcnt vmcnt({7-j})")
        for q in range(4):
            A(f"v_lshlrev_b32 v56, 16, v{16+4*j+q}")
            A(f"v_and_b32 v57, s25, v{16+4*j+q}")
            if j == 0:
                A(f"v_mul_f32 v{48+2*q}, v56, v{8+j}")
                A(f"v_mul_f32 v{49+2*q}, v57, v{8+j}")
            else:
                A(f"v_fmac_f32 v{48+2*q}, v56, v{8+j}")
                A(f"v_fmac_f32 v{49+2*q}, v57, v{8+j}")
    for rot in (4, 8):
        for q in range(8):
            A(f"v_add_f32_dpp v{48+q}, v{48+q}, v{48+q} row_ror:{rot} row_mask:0xf bank_mask:0xf")
    A("""
    v_lshrrev_b32 v5, 4, v0
    v_lshlrev_b32 v5, 7, v5
    v_lshl_add_u32 v5, v1, 5, v5
    ds_write_b128 v5, v[48:51]
    ds_write_b128 v5, v[52:55] offset:16
    v_lshlrev_b32 v6, 2, v0
    s_waitcnt lgkmcnt(0)
    s_barrier
    v_cmp_gt_u32 vcc, 32, v0
    s_and_saveexec_b64 s[26:27], vcc
    s_cbranch_execz L_k1_end
    """)
    for k in range(8):
        A(f"ds_read2_b32 v[{16+2*k}:{17+2*k}], v6 offset0:{64*k} offset1:{64*k+32}") if 64*k+32 < 256 else \
            A(f"ds_read2_b32 v[{16+2*k}:{17+2*k}], v7 offset0:{64*(k-4)} offset1:{64*(k-4)+32}")
        if k == 0:
            A("v_add_u32 v7, 1024, v6")
    A("s_waitcnt lgkmcnt(0)")
    for k in (4, 2, 1):
        for q in range(k):
            A(f"v_pk_add_f32 v[{16+2*q}:{17+2*q}], v[{16+2*q}:{17+2*q}], v[{16+2*(q+k)}:{17+2*(q+k)}]")
    A(f"""
    v_add_f32 v16, v16, v17
    v_cvt_pk_bf16_f32 v16, v16, v16
    v_and_b32 v16, s25, v16
    s_lshr_b32 s23, s21, 4
    s_cmp_eq_u32 s23, 1
    s_cselect_b32 s24, 1.0, 0
    s_cmp_eq_u32 s23, 4
    s_cselect_b32 s24, 1.0, s24
    v_add_f32 v16, s24, v16
    v_cvt_pk_bf16_f32 v16, v16, v16
    v_and_b32 v16, s25, v16
    s_and_b32 s22, s21, 15
    s_lshl_b32 s22, s22, 5
    v_add_u32 v17, s22, v0                    ; d
    v_and_b32 v18, 7, v17
    v_lshlrev_b32 v18, 6, v18
    v_lshrrev_b32 v19, 7, v17
    v_lshl_add_u32 v18, v19, 4, v18
    v_bfe_u32 v19, v17, 3, 2
    v_lshl_add_u32 v18, v19, 2, v18
    v_bfe_u32 v20, v17, 5, 2
    v_add_u32 v18, v18, v20                   ; posA
    s_cmp_lt_u32 s23, 2
    s_cselect_b64 vcc, -1, 0
    v_cndmask_b32 v17, v17, v18, vcc
    {POSC}
    v_lshlrev_b32 v17, 2, v17
    s_lshl_b32 s22, s23, 11                   ; chunk*2048
    buffer_store_dword v16, v17, s[12:15], s22 offen
    s_endpgm
    """)
    A("L_k1_wpk:")
    A(f"""
    s_cmp_ge_u32 s2, {K1_GRID - K1_TP}
    s_cbranch_scc1 L_k1_fill
    s_load_dwordx4 s[4:7], s[0:1], {KA_WR}    ; w_r, w_i
    s_sub_u32 s20, s2, {K1_FFT + K1_MOD + K1_PF}
    s_and_b32 s21, s20, 31                    ; p
    s_lshr_b32 s22, s20, 5                    ; cls
    s_sub_u32 s23, 0, s21
    s_bitcmp1_b32 s22, 0
    s_cselect_b32 s23, s23, s21               ; +-p
    s_add_u32 s24, s22, 1
    s_lshr_b32 s24, s24, 1
    s_lshl_b32 s24, s24, 6
    s_add_u32 s23, s23, s24                   ; residue
    s_cmp_eq_u32 s20, 64
    s_cselect_b32 s23, 32, s23
    s_cmp_eq_u32 s20, 96
    s_cselect_b32 s23, 96, s23
    s_mul_i32 s23, s23, 514
    v_lshrrev_b32 v1, 4, v0                   ; j = 0..15
    v_and_b32 v2, 15, v0
    v_mul_u32_u24 v1, {128*514}, v1
    v_min_u32 v2, 8, v2
    v_lshl_add_u32 v1, v2, 6, v1
    s_waitcnt lgkmcnt(0)
    """)
    WSZ = 2048 * 514
    srd(A, 8, 4, WSZ)
    srd(A, 12, 6, WSZ)
    A("""
    buffer_load_ushort v4, v1, s[8:11], s23 offen
    buffer_load_ushort v5, v1, s[12:15], s23 offen
    s_waitcnt vmcnt(0)
    s_endpgm
    """)
    A("L_k1_fill:")
    A("s_endpgm")
    A("L_k1_pf:")
    A(f"""
    s_cmp_ge_u32 s2, {K1_FFT + K1_MOD + K1_PF}
    s_cbranch_scc1 L_k1_wpk
    s_getpc_b64 s[4:5]
    L_k1_pc:
    s_add_u32 s4, s4, {pf_start_label}-L_k1_pc
    s_addc_u32 s5, s5, 0
    v_lshlrev_b32 v1, 4, v0
    """)
    n = (pf_bytes + 4095) // 4096
    for i in range(n):
        A(f"global_load_dwordx4 v[4:7], v1, s[4:5]")
        if i + 1 < n:
            A("v_add_u32 v1, 0x1000, v1")
    A("s_waitcnt vmcnt(0)")
    A("L_k1_end:")
    A("s_endpgm")
    return descriptor(name, 208, 100, 208)
```

```python
from asmlib import *
from layout import *

K1_FFT = 128
K1_MOD = 96
K1_WPK = 128
WPF = int(os.environ.get('K1_WPF', '3'))
K1_TP = 48 if WPF else 0
K1_PF = 8
K1_GRID = K1_FFT + K1_MOD + K1_WPK + K1_TP + K1_PF
K1_LDS = 4096 + 32 * 528

POSC = "" if os.environ.get('K3V', '7') != '4' else """
    v_and_b32 v20, 0x183, v17
    v_bfe_u32 v19, v17, 2, 1
    v_lshl_add_u32 v20, v19, 6, v20
    v_bfe_u32 v19, v17, 3, 4
    v_lshl_add_u32 v20, v19, 2, v20
    s_cmp_eq_u32 s23, 2
    s_cselect_b64 vcc, -1, 0
    v_cndmask_b32 v17, v17, v20, vcc
"""

XL3 = int(os.environ.get('K1_XL3', '4'))

def gen_k1(A, name, pf_start_label, pf_bytes):
    kernel_header(A, name)
    A(f"""
    s_getpc_b64 s[40:41]
    v_lshlrev_b32 v1, 5, v0
    global_load_dword v200, v1, s[40:41]
    s_cmp_ge_u32 s2, {K1_FFT}
    s_cbranch_scc1 L_k1_side
    s_load_dwordx2 s[4:5], s[0:1], {KA_X}
    s_load_dwordx2 s[6:7], s[0:1], {KA_WS}
    """)
    stamp(A, 'k1', 0)
    A("""
    s_and_b32 s20, s2, 31
    s_lshr_b32 s21, s2, 5
    v_and_b32 v1, 15, v0            ; m / n
    v_bfe_u32 v2, v0, 4, 2          ; g
    v_lshrrev_b32 v3, 6, v0         ; w
    v_lshlrev_b32 v4, 18, v2
    v_lshl_add_u32 v4, v3, 8, v4
    v_lshl_add_u32 v4, v1, 4, v4    ; g*256K + w*256 + m*16
    s_lshl_b32 s22, s20, 10
    s_waitcnt lgkmcnt(0)
    """)
    stamp(A, 'k1', 1)
    srd(A, 8, 4, 2097152)
    L = lambda kk, i: 16 + (kk * 8 + i) * 4
    def xload(q):
        A(f"""
        s_add_u32 s28, s21, {q}
        s_and_b32 s{30+q}, s28, 3
        s_lshr_b32 s29, s{30+q}, 1
        s_lshl_b32 s29, s29, 20
        s_and_b32 s28, s28, 1
        s_lshl_b32 s28, s28, 17
        s_add_u32 s28, s28, s29
        s_add_u32 s28, s28, s22
        """)
        for i in range(4):
            if i: A(f"s_add_u32 s28, s28, 32768")
            A(f"buffer_load_dwordx4 {v(16 + (q*4+i)*4, 4)}, v4, s[8:11], s28 offen")
    xload(0); xload(1)
    srd(A, 12, 6, SZ_ABUF, WS_ABUF)
    stamp(A, 'k1', 2)
    FC = lambda nt, c, kk: 128 + ((nt * 2 + c) * 2 + kk) * 4
    CS, SN = 160, 168
    A(f"""
    v_cvt_f32_u32 v5, v1
    v_mul_f32 v5, {fl(1/64)}, v5            ; n/64
    v_lshlrev_b32 v6, 3, v2
    v_cvt_f32_u32 v6, v6                     ; 8g
    v_mul_f32 v6, v5, v6                     ; n*8g/64
    """)
    for i in range(8):
        if i % 4 == 0:
            q = i // 4
            A(f"""
            s_lshr_b32 s28, s{30+q}, 1
            s_lshl_b32 s28, s28, 5
            s_and_b32 s29, s{30+q}, 1
            s_lshl_b32 s29, s29, 2
            s_add_u32 s28, s28, s29
            v_cvt_f32_u32 v7, s28
            v_fma_f32 v7, v7, v5, v6
            """)
        else:
            A(f"v_add_f32 v7, v7, v5")
        A(f"v_cos_f32 v{CS+i}, v7")
        A(f"v_sin_f32 v{SN+i}, v7")
    def term(kind, i):
        c_, s_ = f"v{CS+i}", f"v{SN+i}"
        return {'c': c_, '-c': '-' + c_, 's': s_, '-s': '-' + s_}[kind]
    tab = {(0, 0): ['c'] * 4, (0, 1): ['-s'] * 4,
           (1, 0): ['c', '-s', '-c', 's'], (1, 1): ['-s', '-c', 's', 'c']}
    for nt in range(2):
        for c in range(2):
            for d in range(4):
                i0, i1 = 2 * d, 2 * d + 1
                A(f"v_cvt_pk_bf16_f32 v{FC(nt,c,0)+d}, {term(tab[(nt,c)][i0%4], i0)}, {term(tab[(nt,c)][i1%4], i1)}")
    A("""
    v_cmp_eq_u32 vcc, 0, v1
    v_mov_b32 v8, 0xbf803f80
    v_and_b32 v9, 1, v1
    v_sub_u32 v9, 0, v9
    v_and_b32 v9, 0x80008000, v9
    """)
    for d in range(4):
        A(f"v_cndmask_b32 v{FC(0,1,0)+d}, v{FC(0,1,0)+d}, v8, vcc")
    for nt in range(2):
        for c in range(2):
            for d in range(4):
                A(f"v_xor_b32 v{FC(nt,c,1)+d}, v9, v{FC(nt,c,0)+d}")
    S0, Q0 = 80, 96
    for k in range(16):
        A(f"v_mov_b64 v[{S0+2*k}:{S0+2*k+1}], 0")
    A("s_mov_b32 s24, 0x3f803f80")
    A("s_mov_b32 s25, 0xffff0000")
    A("""
    v_bfe_u32 v10, v0, 3, 1                 ; b3 = stat
    v_bfe_u32 v11, v0, 2, 1                 ; b2 = kk
    v_lshlrev_b32 v10, 8, v10
    v_lshl_add_u32 v10, v3, 9, v10          ; w*512 + st*256
    v_lshl_add_u32 v10, v11, 7, v10         ; + kk*128
    v_lshl_add_u32 v10, v2, 5, v10
    v_and_b32 v11, 63, v0
    v_lshlrev_b32 v11, 2, v11
    v_lshl_add_u32 v12, v3, 9, v11
    v_lshlrev_b32 v13, 9, v3
    v_lshl_add_u32 v13, v2, 5, v13
    v_mul_u32_u24 v14, 528, v1
    v_lshl_add_u32 v15, v3, 2, v2
    v_lshl_add_u32 v14, v15, 4, v14
    v_bfe_u32 v112, v0, 5, 1
    v_lshl_add_u32 v112, v3, 3, v112        ; row (k = 0)
    v_and_b32 v113, 31, v0
    v_mul_u32_u24 v15, 528, v112
    v_lshl_add_u32 v15, v113, 4, v15
    v_lshlrev_b32 v112, 16, v112
    v_lshl_add_u32 v112, v113, 4, v112
    s_lshl_b32 s26, s20, 11
    s_lshl_b32 s27, s21, 9
    s_add_u32 s26, s26, s27                 ; s2*2048 + p*512
    s_add_u32 s27, s26, 0x100000
    """)
    stamp(A, 'k1', 3)
    r1a = lambda k: f"v_add_f32_dpp v{S0+k}, v{S0+k}, v{S0+k} row_ror:8 row_mask:0xf bank_mask:0x3"
    r1b = lambda k: f"v_add_f32_dpp v{S0+k}, v{Q0+k}, v{Q0+k} row_ror:8 row_mask:0xf bank_mask:0xc"
    r2a = lambda k: f"v_add_f32_dpp v{S0+k}, v{S0+k}, v{S0+k} row_shl:4 row_mask:0xf bank_mask:0x5"
    r2b = lambda k: f"v_add_f32_dpp v{S0+k}, v{S0+8+k}, v{S0+8+k} row_shr:4 row_mask:0xf bank_mask:0xa"
    r3 = lambda k: f"v_add_f32_dpp v{S0+k}, v{S0+k}, v{S0+k} quad_perm:[1,0,3,2] row_mask:0xf bank_mask:0xf"
    r4 = lambda k: f"v_add_f32_dpp v{S0+k}, v{S0+k}, v{S0+k} quad_perm:[2,3,0,1] row_mask:0xf bank_mask:0xf"
    def lagged(k):
        o = []
        if 0 <= k - 1 < 16: o.append(r1a(k - 1))
        if 0 <= k - 2 < 16: o.append(r1b(k - 2))
        if 0 <= k - 3 < 8: o.append(r2a(k - 3))
        if 0 <= k - 11 < 8: o.append(r2b(k - 11))
        if 0 <= k - 12 < 8: o.append(r3(k - 12))
        if 0 <= k - 13 < 8: o.append(r4(k - 13))
        return o
    for k in range(21):
        if k < 16:
            if k == 0: xload(2)
            if k == XL3: xload(3)
            if k == 1: stamp(A, 'k1', 4)
            for j_ in range(4):
                A(f"v_dot2c_f32_bf16 v{S0+k}, s24, v{16+4*k+j_}")
                A(f"v_dot2c_f32_bf16 v{Q0+k}, v{16+4*k+j_}, v{16+4*k+j_}")
        A.ext(lagged(k))
    stamp(A, 'k1', 5)
    A(f"ds_write_b128 v10, v[{S0}:{S0+3}]")
    A(f"ds_write_b128 v10, v[{S0+4}:{S0+7}] offset:16")
    A("""
    s_waitcnt lgkmcnt(0)
    s_barrier
    ds_read2st64_b32 v[96:97], v11 offset0:0 offset1:1
    ds_read2st64_b32 v[98:99], v11 offset0:2 offset1:3
    ds_read2st64_b32 v[100:101], v11 offset0:4 offset1:5
    ds_read2st64_b32 v[102:103], v11 offset0:6 offset1:7
    """)
    T = lambda e, k: 176 + e * 16 + k
    for p in range(4):
        if p < 3:
            A(f"s_cmp_lg_u32 s21, {p}")
            A(f"s_cbranch_scc1 L_k1_p{p+1}")
        for k in range(16):
            A(f"v_lshlrev_b32 v{T(0,k)}, 16, v{16+4*k+p}")
            A(f"v_and_b32 v{T(1,k)}, s25, v{16+4*k+p}")
        if p < 3:
            A("s_branch L_k1_pdone")
            A(f"L_k1_p{p+1}:")
    A("L_k1_pdone:")
    stamp(A, 'k1', 6)
    A("""
    s_waitcnt lgkmcnt(0)
    v_pk_add_f32 v[96:97], v[96:97], v[98:99]
    v_pk_add_f32 v[100:101], v[100:101], v[102:103]
    v_pk_add_f32 v[96:97], v[96:97], v[100:101]
    """)
    A(f"""
    v_mul_f32 v96, {fl(1/512)}, v96          ; mean
    v_mul_f32 v97, {fl(1/512)}, v97          ; E[x^2]
    v_fma_f32 v97, -v96, v96, v97
    v_max_f32 v97, 0, v97
    v_add_f32 v97, {fl(1e-5)}, v97
    v_rsq_f32 v97, v97
    v_mul_f32 v96, -1.0, v96
    v_mul_f32 v96, v96, v97                  ; -mean*rstd
    ds_write2st64_b32 v12, v97, v96 offset0:8 offset1:9
    s_waitcnt lgkmcnt(0)
    """)
    for kk in range(2):
        for h in range(2):
            A(f"ds_read_b128 v[{80+kk*8+h*4}:{80+kk*8+h*4+3}], v13 offset:{2048 + kk*128 + h*16}")
            A(f"ds_read_b128 v[{96+kk*8+h*4}:{96+kk*8+h*4+3}], v13 offset:{2048 + 256 + kk*128 + h*16}")
    stamp(A, 'k1', 7)
    DF = lambda e, kk: 16 + (e * 2 + kk) * 4
    ACC = lambda e, nt, c: 32 + ((e * 2 + nt) * 2 + c) * 4
    for kk in range(2):
        A(f"s_waitcnt lgkmcnt({4 if kk == 0 else 0})")
        for e in range(2):
            for d in range(4):
                k = kk * 8 + 2 * d
                A(f"v_pk_fma_f32 v[{T(e,k)}:{T(e,k)+1}], v[{T(e,k)}:{T(e,k)+1}], v[{80+k}:{81+k}], v[{96+k}:{97+k}]")
    P = []
    for e in range(2):
        for kk in range(2):
            for d in range(4):
                k = kk * 8 + 2 * d
                P.append(f"v_cvt_pk_bf16_f32 v{DF(e,kk)+d}, v{T(e,k)}, v{T(e,k)+1}")
        for nt in range(2):
            for kk in range(2):
                for c in range(2):
                    cin = "0" if kk == 0 else v(ACC(e, nt, c), 4)
                    P.append(f"v_mfma_f32_16x16x32_bf16 {v(ACC(e,nt,c),4)}, {v(DF(e,kk),4)}, {v(FC(nt,c,kk),4)}, {cin}")
    for e in range(2):
        for nt in range(2):
            o = 64 + (e * 2 + nt) * 4
            for r in range(4):
                P.append(f"v_cvt_pk_bf16_f32 v{o+r}, v{ACC(e,nt,0)+r}, v{ACC(e,nt,1)+r}")
            P.append(f"ds_write_b128 v14, {v(o,4)} offset:{4096 + nt*16*528 + e*256}")
    A.ext(schedule(P))
    A("s_waitcnt lgkmcnt(0)")
    A("s_barrier")
    for k in range(4):
        A(f"ds_read_b128 {v(64+4*k,4)}, v15 offset:{4096 + k*2*528}")
    for k in range(4):
        A(f"s_waitcnt lgkmcnt({3-k})")
        A(f"buffer_store_dwordx4 {v(64+4*k,4)}, v112, s[12:15], s26 offen")
        if k < 3: A("s_add_u32 s26, s26, 0x20000")
    stamp(A, 'k1', 8)
    dump_stamps(A, 'k1', 9, 6, 4, vt=2)
    A("s_endpgm")

    A("L_k1_side:")
    A(f"""
    s_cmp_ge_u32 s2, {K1_FFT + K1_MOD}
    s_cbranch_scc1 L_k1_pf
    s_load_dwordx4 s[4:7], s[0:1], {KA_C}     ; c, w_mod
    s_load_dwordx2 s[16:17], s[0:1], {KA_WS}
    s_sub_u32 s20, s2, {K1_FFT}
    s_and_b32 s21, s20, 7
    s_lshr_b32 s22, s20, 4
    s_lshl_b32 s22, s22, 3
    s_add_u32 s21, s21, s22
    s_lshl_b32 s21, s21, 1
    s_bfe_u32 s22, s20, 0x10003
    s_add_u32 s21, s21, s22                   ; cg 0..95
    v_and_b32 v1, 3, v0                       ; cq
    v_lshrrev_b32 v2, 2, v0                   ; rg 0..63
    v_mul_u32_u24 v3, 6144, v2
    v_lshl_add_u32 v3, v1, 4, v3
    v_lshlrev_b32 v4, 1, v2
    s_lshl_b32 s22, s21, 6
    s_waitcnt lgkmcnt(0)
    """)
    srd(A, 8, 6, 512 * 6144)
    srd(A, 12, 4, 1024)
    for j in range(8):
        A(f"buffer_load_ushort v{8+j}, v4, s[12:15], 0 offen offset:{j*128}")
    for j in range(8):
        A(f"s_add_u32 s23, s22, {j * 64 * 6144}")
        A(f"buffer_load_dwordx4 {v(16+4*j,4)}, v3, s[8:11], s23 offen")
    srd(A, 12, 16, SZ_MOD, WS_MOD)
    A("s_mov_b32 s25, 0xffff0000")
    A("s_waitcnt vmcnt(8)")
    for j in range(8):
        A(f"v_lshlrev_b32 v{8+j}, 16, v{8+j}")
        A(f"v_mul_f32 v{48+j}, {fl(-1.4426950408889634)}, v{8+j}")
        A(f"v_exp_f32 v{48+j}, v{48+j}")
    for j in range(8):
        A(f"v_add_f32 v{48+j}, 1.0, v{48+j}")
        A(f"v_rcp_f32 v{48+j}, v{48+j}")
    for j in range(8):
        A(f"v_mul_f32 v{8+j}, v{8+j}, v{48+j}")
        A(f"v_cvt_pk_bf16_f32 v{8+j}, v{8+j}, v{8+j}")
        A(f"v_and_b32 v{8+j}, s25, v{8+j}")
    for j in range(8):
        A(f"s_waitcnt vmcnt({7-j})")
        for q in range(4):
            A(f"v_lshlrev_b32 v56, 16, v{16+4*j+q}")
            A(f"v_and_b32 v57, s25, v{16+4*j+q}")
            if j == 0:
                A(f"v_mul_f32 v{48+2*q}, v56, v{8+j}")
                A(f"v_mul_f32 v{49+2*q}, v57, v{8+j}")
            else:
                A(f"v_fmac_f32 v{48+2*q}, v56, v{8+j}")
                A(f"v_fmac_f32 v{49+2*q}, v57, v{8+j}")
    for rot in (4, 8):
        for q in range(8):
            A(f"v_add_f32_dpp v{48+q}, v{48+q}, v{48+q} row_ror:{rot} row_mask:0xf bank_mask:0xf")
    A("""
    v_lshrrev_b32 v5, 4, v0
    v_lshlrev_b32 v5, 7, v5
    v_lshl_add_u32 v5, v1, 5, v5
    ds_write_b128 v5, v[48:51]
    ds_write_b128 v5, v[52:55] offset:16
    v_lshlrev_b32 v6, 2, v0
    s_waitcnt lgkmcnt(0)
    s_barrier
    v_cmp_gt_u32 vcc, 32, v0
    s_and_saveexec_b64 s[26:27], vcc
    s_cbranch_execz L_k1_end
    """)
    for k in range(8):
        A(f"ds_read2_b32 v[{16+2*k}:{17+2*k}], v6 offset0:{64*k} offset1:{64*k+32}") if 64*k+32 < 256 else \
            A(f"ds_read2_b32 v[{16+2*k}:{17+2*k}], v7 offset0:{64*(k-4)} offset1:{64*(k-4)+32}")
        if k == 0:
            A("v_add_u32 v7, 1024, v6")
    A("s_waitcnt lgkmcnt(0)")
    for k in (4, 2, 1):
        for q in range(k):
            A(f"v_pk_add_f32 v[{16+2*q}:{17+2*q}], v[{16+2*q}:{17+2*q}], v[{16+2*(q+k)}:{17+2*(q+k)}]")
    A(f"""
    v_add_f32 v16, v16, v17
    v_cvt_pk_bf16_f32 v16, v16, v16
    v_and_b32 v16, s25, v16
    s_lshr_b32 s23, s21, 4
    s_cmp_eq_u32 s23, 1
    s_cselect_b32 s24, 1.0, 0
    s_cmp_eq_u32 s23, 4
    s_cselect_b32 s24, 1.0, s24
    v_add_f32 v16, s24, v16
    v_cvt_pk_bf16_f32 v16, v16, v16
    v_and_b32 v16, s25, v16
    s_and_b32 s22, s21, 15
    s_lshl_b32 s22, s22, 5
    v_add_u32 v17, s22, v0                    ; d
    v_and_b32 v18, 7, v17
    v_lshlrev_b32 v18, 6, v18
    v_lshrrev_b32 v19, 7, v17
    v_lshl_add_u32 v18, v19, 4, v18
    v_bfe_u32 v19, v17, 3, 2
    v_lshl_add_u32 v18, v19, 2, v18
    v_bfe_u32 v20, v17, 5, 2
    v_add_u32 v18, v18, v20                   ; posA
    s_cmp_lt_u32 s23, 2
    s_cselect_b64 vcc, -1, 0
    v_cndmask_b32 v17, v17, v18, vcc
    {POSC}
    v_lshlrev_b32 v17, 2, v17
    s_lshl_b32 s22, s23, 11                   ; chunk*2048
    buffer_store_dword v16, v17, s[12:15], s22 offen
    s_endpgm
    """)
    A("L_k1_wpk:")
    A(f"""
    s_cmp_ge_u32 s2, {K1_GRID - K1_TP}
    s_cbranch_scc1 L_k1_fill
    s_load_dwordx4 s[4:7], s[0:1], {KA_WR}    ; w_r, w_i
    s_sub_u32 s20, s2, {K1_FFT + K1_MOD + K1_PF}
    s_and_b32 s21, s20, 31                    ; p
    s_lshr_b32 s22, s20, 5                    ; cls
    s_sub_u32 s23, 0, s21
    s_bitcmp1_b32 s22, 0
    s_cselect_b32 s23, s23, s21               ; +-p
    s_add_u32 s24, s22, 1
    s_lshr_b32 s24, s24, 1
    s_lshl_b32 s24, s24, 6
    s_add_u32 s23, s23, s24                   ; residue
    s_cmp_eq_u32 s20, 64
    s_cselect_b32 s23, 32, s23
    s_cmp_eq_u32 s20, 96
    s_cselect_b32 s23, 96, s23
    s_mul_i32 s23, s23, 514
    v_lshrrev_b32 v1, 4, v0                   ; j = 0..15
    v_and_b32 v2, 15, v0
    v_mul_u32_u24 v1, {128*514}, v1
    v_min_u32 v2, 8, v2
    v_lshl_add_u32 v1, v2, 6, v1
    s_waitcnt lgkmcnt(0)
    """)
    WSZ = 2048 * 514
    srd(A, 8, 4, WSZ)
    srd(A, 12, 6, WSZ)
    A("""
    buffer_load_ushort v4, v1, s[8:11], s23 offen
    buffer_load_ushort v5, v1, s[12:15], s23 offen
    s_waitcnt vmcnt(0)
    s_endpgm
    """)
    A("L_k1_fill:")
    A(f"""
    s_cmp_ge_u32 s2, {K1_GRID}
    s_cbranch_scc1 L_k1_end
    s_load_dwordx4 s[4:7], s[0:1], {KA_WG}
    s_load_dwordx2 s[16:17], s[0:1], {KA_WDN}
    s_sub_u32 s21, s2, {K1_GRID - K1_TP}
    s_lshl_b32 s21, s21, 15
    v_lshlrev_b32 v1, 7, v0
    s_waitcnt lgkmcnt(0)
    """)
    if WPF & 1:
        srd(A, 8, 16, 1376 * 1024)
        A("buffer_load_dword v4, v1, s[8:11], s21 offen")
    if WPF & 2:
        srd(A, 8, 4, 1376 * 1024)
        srd(A, 12, 6, 1376 * 1024)
        A("buffer_load_dword v5, v1, s[8:11], s21 offen")
        A("buffer_load_dword v6, v1, s[12:15], s21 offen")
    A("s_waitcnt vmcnt(0)")
    A("s_endpgm")
    A("L_k1_pf:")
    A(f"""
    s_cmp_ge_u32 s2, {K1_FFT + K1_MOD + K1_PF}
    s_cbranch_scc1 L_k1_wpk
    s_getpc_b64 s[4:5]
    L_k1_pc:
    s_add_u32 s4, s4, {pf_start_label}-L_k1_pc
    s_addc_u32 s5, s5, 0
    v_lshlrev_b32 v1, 4, v0
    """)
    n = (pf_bytes + 4095) // 4096
    for i in range(n):
        A(f"global_load_dwordx4 v[4:7], v1, s[4:5]")
        if i + 1 < n:
            A("v_add_u32 v1, 0x1000, v1")
    A("s_waitcnt vmcnt(0)")
    A("L_k1_end:")
    A("s_endpgm")
    return descriptor(name, 208, 100, 208)
```

```python
from asmlib import *
from layout import *

K1_FFT = 128
K1_MOD = 96
K1_WPK = 128
WPF = int(os.environ.get('K1_WPF', '1'))
K1_TP = 48 if WPF else 0
K1_PF = 8
K1_GRID = K1_FFT + K1_MOD + K1_WPK + K1_TP + K1_PF
K1_LDS = 4096 + 32 * 528

POSC = "" if os.environ.get('K3V', '7') != '4' else """
    v_and_b32 v20, 0x183, v17
    v_bfe_u32 v19, v17, 2, 1
    v_lshl_add_u32 v20, v19, 6, v20
    v_bfe_u32 v19, v17, 3, 4
    v_lshl_add_u32 v20, v19, 2, v20
    s_cmp_eq_u32 s23, 2
    s_cselect_b64 vcc, -1, 0
    v_cndmask_b32 v17, v17, v20, vcc
"""

XL3 = int(os.environ.get('K1_XL3', '4'))

def gen_k1(A, name, pf_start_label, pf_bytes):
    kernel_header(A, name)
    A(f"""
    s_getpc_b64 s[40:41]
    v_lshlrev_b32 v1, 5, v0
    global_load_dword v200, v1, s[40:41]
    s_cmp_ge_u32 s2, {K1_FFT}
    s_cbranch_scc1 L_k1_side
    s_load_dwordx2 s[4:5], s[0:1], {KA_X}
    s_load_dwordx2 s[6:7], s[0:1], {KA_WS}
    """)
    stamp(A, 'k1', 0)
    A("""
    s_and_b32 s20, s2, 31
    s_lshr_b32 s21, s2, 5
    v_and_b32 v1, 15, v0            ; m / n
    v_bfe_u32 v2, v0, 4, 2          ; g
    v_lshrrev_b32 v3, 6, v0         ; w
    v_lshlrev_b32 v4, 18, v2
    v_lshl_add_u32 v4, v3, 8, v4
    v_lshl_add_u32 v4, v1, 4, v4    ; g*256K + w*256 + m*16
    s_lshl_b32 s22, s20, 10
    s_waitcnt lgkmcnt(0)
    """)
    stamp(A, 'k1', 1)
    srd(A, 8, 4, 2097152)
    L = lambda kk, i: 16 + (kk * 8 + i) * 4
    def xload(q):
        A(f"""
        s_add_u32 s28, s21, {q}
        s_and_b32 s{30+q}, s28, 3
        s_lshr_b32 s29, s{30+q}, 1
        s_lshl_b32 s29, s29, 20
        s_and_b32 s28, s28, 1
        s_lshl_b32 s28, s28, 17
        s_add_u32 s28, s28, s29
        s_add_u32 s28, s28, s22
        """)
        for i in range(4):
            if i: A(f"s_add_u32 s28, s28, 32768")
            A(f"buffer_load_dwordx4 {v(16 + (q*4+i)*4, 4)}, v4, s[8:11], s28 offen")
    xload(0); xload(1)
    srd(A, 12, 6, SZ_ABUF, WS_ABUF)
    stamp(A, 'k1', 2)
    FC = lambda nt, c, kk: 128 + ((nt * 2 + c) * 2 + kk) * 4
    CS, SN = 160, 168
    A(f"""
    v_cvt_f32_u32 v5, v1
    v_mul_f32 v5, {fl(1/64)}, v5            ; n/64
    v_lshlrev_b32 v6, 3, v2
    v_cvt_f32_u32 v6, v6                     ; 8g
    v_mul_f32 v6, v5, v6                     ; n*8g/64
    """)
    for i in range(8):
        if i % 4 == 0:
            q = i // 4
            A(f"""
            s_lshr_b32 s28, s{30+q}, 1
            s_lshl_b32 s28, s28, 5
            s_and_b32 s29, s{30+q}, 1
            s_lshl_b32 s29, s29, 2
            s_add_u32 s28, s28, s29
            v_cvt_f32_u32 v7, s28
            v_fma_f32 v7, v7, v5, v6
            """)
        else:
            A(f"v_add_f32 v7, v7, v5")
        A(f"v_cos_f32 v{CS+i}, v7")
        A(f"v_sin_f32 v{SN+i}, v7")
    def term(kind, i):
        c_, s_ = f"v{CS+i}", f"v{SN+i}"
        return {'c': c_, '-c': '-' + c_, 's': s_, '-s': '-' + s_}[kind]
    tab = {(0, 0): ['c'] * 4, (0, 1): ['-s'] * 4,
           (1, 0): ['c', '-s', '-c', 's'], (1, 1): ['-s', '-c', 's', 'c']}
    for nt in range(2):
        for c in range(2):
            for d in range(4):
                i0, i1 = 2 * d, 2 * d + 1
                A(f"v_cvt_pk_bf16_f32 v{FC(nt,c,0)+d}, {term(tab[(nt,c)][i0%4], i0)}, {term(tab[(nt,c)][i1%4], i1)}")
    A("""
    v_cmp_eq_u32 vcc, 0, v1
    v_mov_b32 v8, 0xbf803f80
    v_and_b32 v9, 1, v1
    v_sub_u32 v9, 0, v9
    v_and_b32 v9, 0x80008000, v9
    """)
    for d in range(4):
        A(f"v_cndmask_b32 v{FC(0,1,0)+d}, v{FC(0,1,0)+d}, v8, vcc")
    for nt in range(2):
        for c in range(2):
            for d in range(4):
                A(f"v_xor_b32 v{FC(nt,c,1)+d}, v9, v{FC(nt,c,0)+d}")
    S0, Q0 = 80, 96
    for k in range(16):
        A(f"v_mov_b64 v[{S0+2*k}:{S0+2*k+1}], 0")
    A("s_mov_b32 s24, 0x3f803f80")
    A("s_mov_b32 s25, 0xffff0000")
    A("""
    v_bfe_u32 v10, v0, 3, 1                 ; b3 = stat
    v_bfe_u32 v11, v0, 2, 1                 ; b2 = kk
    v_lshlrev_b32 v10, 8, v10
    v_lshl_add_u32 v10, v3, 9, v10          ; w*512 + st*256
    v_lshl_add_u32 v10, v11, 7, v10         ; + kk*128
    v_lshl_add_u32 v10, v2, 5, v10
    v_and_b32 v11, 63, v0
    v_lshlrev_b32 v11, 2, v11
    v_lshl_add_u32 v12, v3, 9, v11
    v_lshlrev_b32 v13, 9, v3
    v_lshl_add_u32 v13, v2, 5, v13
    v_mul_u32_u24 v14, 528, v1
    v_lshl_add_u32 v15, v3, 2, v2
    v_lshl_add_u32 v14, v15, 4, v14
    v_bfe_u32 v112, v0, 5, 1
    v_lshl_add_u32 v112, v3, 3, v112        ; row (k = 0)
    v_and_b32 v113, 31, v0
    v_mul_u32_u24 v15, 528, v112
    v_lshl_add_u32 v15, v113, 4, v15
    v_lshlrev_b32 v112, 16, v112
    v_lshl_add_u32 v112, v113, 4, v112
    s_lshl_b32 s26, s20, 11
    s_lshl_b32 s27, s21, 9
    s_add_u32 s26, s26, s27                 ; s2*2048 + p*512
    s_add_u32 s27, s26, 0x100000
    """)
    stamp(A, 'k1', 3)
    r1a = lambda k: f"v_add_f32_dpp v{S0+k}, v{S0+k}, v{S0+k} row_ror:8 row_mask:0xf bank_mask:0x3"
    r1b = lambda k: f"v_add_f32_dpp v{S0+k}, v{Q0+k}, v{Q0+k} row_ror:8 row_mask:0xf bank_mask:0xc"
    r2a = lambda k: f"v_add_f32_dpp v{S0+k}, v{S0+k}, v{S0+k} row_shl:4 row_mask:0xf bank_mask:0x5"
    r2b = lambda k: f"v_add_f32_dpp v{S0+k}, v{S0+8+k}, v{S0+8+k} row_shr:4 row_mask:0xf bank_mask:0xa"
    r3 = lambda k: f"v_add_f32_dpp v{S0+k}, v{S0+k}, v{S0+k} quad_perm:[1,0,3,2] row_mask:0xf bank_mask:0xf"
    r4 = lambda k: f"v_add_f32_dpp v{S0+k}, v{S0+k}, v{S0+k} quad_perm:[2,3,0,1] row_mask:0xf bank_mask:0xf"
    def lagged(k):
        o = []
        if 0 <= k - 1 < 16: o.append(r1a(k - 1))
        if 0 <= k - 2 < 16: o.append(r1b(k - 2))
        if 0 <= k - 3 < 8: o.append(r2a(k - 3))
        if 0 <= k - 11 < 8: o.append(r2b(k - 11))
        if 0 <= k - 12 < 8: o.append(r3(k - 12))
        if 0 <= k - 13 < 8: o.append(r4(k - 13))
        return o
    for k in range(21):
        if k < 16:
            if k == 0: xload(2)
            if k == XL3: xload(3)
            if k == 1: stamp(A, 'k1', 4)
            for j_ in range(4):
                A(f"v_dot2c_f32_bf16 v{S0+k}, s24, v{16+4*k+j_}")
                A(f"v_dot2c_f32_bf16 v{Q0+k}, v{16+4*k+j_}, v{16+4*k+j_}")
        A.ext(lagged(k))
    stamp(A, 'k1', 5)
    A(f"ds_write_b128 v10, v[{S0}:{S0+3}]")
    A(f"ds_write_b128 v10, v[{S0+4}:{S0+7}] offset:16")
    A("""
    s_waitcnt lgkmcnt(0)
    s_barrier
    ds_read2st64_b32 v[96:97], v11 offset0:0 offset1:1
    ds_read2st64_b32 v[98:99], v11 offset0:2 offset1:3
    ds_read2st64_b32 v[100:101], v11 offset0:4 offset1:5
    ds_read2st64_b32 v[102:103], v11 offset0:6 offset1:7
    """)
    T = lambda e, k: 176 + e * 16 + k
    for p in range(4):
        if p < 3:
            A(f"s_cmp_lg_u32 s21, {p}")
            A(f"s_cbranch_scc1 L_k1_p{p+1}")
        for k in range(16):
            A(f"v_lshlrev_b32 v{T(0,k)}, 16, v{16+4*k+p}")
            A(f"v_and_b32 v{T(1,k)}, s25, v{16+4*k+p}")
        if p < 3:
            A("s_branch L_k1_pdone")
            A(f"L_k1_p{p+1}:")
    A("L_k1_pdone:")
    stamp(A, 'k1', 6)
    A("""
    s_waitcnt lgkmcnt(0)
    v_pk_add_f32 v[96:97], v[96:97], v[98:99]
    v_pk_add_f32 v[100:101], v[100:101], v[102:103]
    v_pk_add_f32 v[96:97], v[96:97], v[100:101]
    """)
    A(f"""
    v_mul_f32 v96, {fl(1/512)}, v96          ; mean
    v_mul_f32 v97, {fl(1/512)}, v97          ; E[x^2]
    v_fma_f32 v97, -v96, v96, v97
    v_max_f32 v97, 0, v97
    v_add_f32 v97, {fl(1e-5)}, v97
    v_rsq_f32 v97, v97
    v_mul_f32 v96, -1.0, v96
    v_mul_f32 v96, v96, v97                  ; -mean*rstd
    ds_write2st64_b32 v12, v97, v96 offset0:8 offset1:9
    s_waitcnt lgkmcnt(0)
    """)
    for kk in range(2):
        for h in range(2):
            A(f"ds_read_b128 v[{80+kk*8+h*4}:{80+kk*8+h*4+3}], v13 offset:{2048 + kk*128 + h*16}")
            A(f"ds_read_b128 v[{96+kk*8+h*4}:{96+kk*8+h*4+3}], v13 offset:{2048 + 256 + kk*128 + h*16}")
    stamp(A, 'k1', 7)
    DF = lambda e, kk: 16 + (e * 2 + kk) * 4
    ACC = lambda e, nt, c: 32 + ((e * 2 + nt) * 2 + c) * 4
    for kk in range(2):
        A(f"s_waitcnt lgkmcnt({4 if kk == 0 else 0})")
        for e in range(2):
            for d in range(4):
                k = kk * 8 + 2 * d
                A(f"v_pk_fma_f32 v[{T(e,k)}:{T(e,k)+1}], v[{T(e,k)}:{T(e,k)+1}], v[{80+k}:{81+k}], v[{96+k}:{97+k}]")
    P = []
    for e in range(2):
        for kk in range(2):
            for d in range(4):
                k = kk * 8 + 2 * d
                P.append(f"v_cvt_pk_bf16_f32 v{DF(e,kk)+d}, v{T(e,k)}, v{T(e,k)+1}")
        for nt in range(2):
            for kk in range(2):
                for c in range(2):
                    cin = "0" if kk == 0 else v(ACC(e, nt, c), 4)
                    P.append(f"v_mfma_f32_16x16x32_bf16 {v(ACC(e,nt,c),4)}, {v(DF(e,kk),4)}, {v(FC(nt,c,kk),4)}, {cin}")
    for e in range(2):
        for nt in range(2):
            o = 64 + (e * 2 + nt) * 4
            for r in range(4):
                P.append(f"v_cvt_pk_bf16_f32 v{o+r}, v{ACC(e,nt,0)+r}, v{ACC(e,nt,1)+r}")
            P.append(f"ds_write_b128 v14, {v(o,4)} offset:{4096 + nt*16*528 + e*256}")
    A.ext(schedule(P))
    A("s_waitcnt lgkmcnt(0)")
    A("s_barrier")
    for k in range(4):
        A(f"ds_read_b128 {v(64+4*k,4)}, v15 offset:{4096 + k*2*528}")
    for k in range(4):
        A(f"s_waitcnt lgkmcnt({3-k})")
        A(f"buffer_store_dwordx4 {v(64+4*k,4)}, v112, s[12:15], s26 offen")
        if k < 3: A("s_add_u32 s26, s26, 0x20000")
    stamp(A, 'k1', 8)
    dump_stamps(A, 'k1', 9, 6, 4, vt=2)
    A("s_endpgm")

    A("L_k1_side:")
    A(f"""
    s_cmp_ge_u32 s2, {K1_FFT + K1_MOD}
    s_cbranch_scc1 L_k1_pf
    s_load_dwordx4 s[4:7], s[0:1], {KA_C}     ; c, w_mod
    s_load_dwordx2 s[16:17], s[0:1], {KA_WS}
    s_sub_u32 s20, s2, {K1_FFT}
    s_and_b32 s21, s20, 7
    s_lshr_b32 s22, s20, 4
    s_lshl_b32 s22, s22, 3
    s_add_u32 s21, s21, s22
    s_lshl_b32 s21, s21, 1
    s_bfe_u32 s22, s20, 0x10003
    s_add_u32 s21, s21, s22                   ; cg 0..95
    v_and_b32 v1, 3, v0                       ; cq
    v_lshrrev_b32 v2, 2, v0                   ; rg 0..63
    v_mul_u32_u24 v3, 6144, v2
    v_lshl_add_u32 v3, v1, 4, v3
    v_lshlrev_b32 v4, 1, v2
    s_lshl_b32 s22, s21, 6
    s_waitcnt lgkmcnt(0)
    """)
    srd(A, 8, 6, 512 * 6144)
    srd(A, 12, 4, 1024)
    for j in range(8):
        A(f"buffer_load_ushort v{8+j}, v4, s[12:15], 0 offen offset:{j*128}")
    for j in range(8):
        A(f"s_add_u32 s23, s22, {j * 64 * 6144}")
        A(f"buffer_load_dwordx4 {v(16+4*j,4)}, v3, s[8:11], s23 offen")
    srd(A, 12, 16, SZ_MOD, WS_MOD)
    A("s_mov_b32 s25, 0xffff0000")
    A("s_waitcnt vmcnt(8)")
    for j in range(8):
        A(f"v_lshlrev_b32 v{8+j}, 16, v{8+j}")
        A(f"v_mul_f32 v{48+j}, {fl(-1.4426950408889634)}, v{8+j}")
        A(f"v_exp_f32 v{48+j}, v{48+j}")
    for j in range(8):
        A(f"v_add_f32 v{48+j}, 1.0, v{48+j}")
        A(f"v_rcp_f32 v{48+j}, v{48+j}")
    for j in range(8):
        A(f"v_mul_f32 v{8+j}, v{8+j}, v{48+j}")
        A(f"v_cvt_pk_bf16_f32 v{8+j}, v{8+j}, v{8+j}")
        A(f"v_and_b32 v{8+j}, s25, v{8+j}")
    for j in range(8):
        A(f"s_waitcnt vmcnt({7-j})")
        for q in range(4):
            A(f"v_lshlrev_b32 v56, 16, v{16+4*j+q}")
            A(f"v_and_b32 v57, s25, v{16+4*j+q}")
            if j == 0:
                A(f"v_mul_f32 v{48+2*q}, v56, v{8+j}")
                A(f"v_mul_f32 v{49+2*q}, v57, v{8+j}")
            else:
                A(f"v_fmac_f32 v{48+2*q}, v56, v{8+j}")
                A(f"v_fmac_f32 v{49+2*q}, v57, v{8+j}")
    for rot in (4, 8):
        for q in range(8):
            A(f"v_add_f32_dpp v{48+q}, v{48+q}, v{48+q} row_ror:{rot} row_mask:0xf bank_mask:0xf")
    A("""
    v_lshrrev_b32 v5, 4, v0
    v_lshlrev_b32 v5, 7, v5
    v_lshl_add_u32 v5, v1, 5, v5
    ds_write_b128 v5, v[48:51]
    ds_write_b128 v5, v[52:55] offset:16
    v_lshlrev_b32 v6, 2, v0
    s_waitcnt lgkmcnt(0)
    s_barrier
    v_cmp_gt_u32 vcc, 32, v0
    s_and_saveexec_b64 s[26:27], vcc
    s_cbranch_execz L_k1_end
    """)
    for k in range(8):
        A(f"ds_read2_b32 v[{16+2*k}:{17+2*k}], v6 offset0:{64*k} offset1:{64*k+32}") if 64*k+32 < 256 else \
            A(f"ds_read2_b32 v[{16+2*k}:{17+2*k}], v7 offset0:{64*(k-4)} offset1:{64*(k-4)+32}")
        if k == 0:
            A("v_add_u32 v7, 1024, v6")
    A("s_waitcnt lgkmcnt(0)")
    for k in (4, 2, 1):
        for q in range(k):
            A(f"v_pk_add_f32 v[{16+2*q}:{17+2*q}], v[{16+2*q}:{17+2*q}], v[{16+2*(q+k)}:{17+2*(q+k)}]")
    A(f"""
    v_add_f32 v16, v16, v17
    v_cvt_pk_bf16_f32 v16, v16, v16
    v_and_b32 v16, s25, v16
    s_lshr_b32 s23, s21, 4
    s_cmp_eq_u32 s23, 1
    s_cselect_b32 s24, 1.0, 0
    s_cmp_eq_u32 s23, 4
    s_cselect_b32 s24, 1.0, s24
    v_add_f32 v16, s24, v16
    v_cvt_pk_bf16_f32 v16, v16, v16
    v_and_b32 v16, s25, v16
    s_and_b32 s22, s21, 15
    s_lshl_b32 s22, s22, 5
    v_add_u32 v17, s22, v0                    ; d
    v_and_b32 v18, 7, v17
    v_lshlrev_b32 v18, 6, v18
    v_lshrrev_b32 v19, 7, v17
    v_lshl_add_u32 v18, v19, 4, v18
    v_bfe_u32 v19, v17, 3, 2
    v_lshl_add_u32 v18, v19, 2, v18
    v_bfe_u32 v20, v17, 5, 2
    v_add_u32 v18, v18, v20                   ; posA
    s_cmp_lt_u32 s23, 2
    s_cselect_b64 vcc, -1, 0
    v_cndmask_b32 v17, v17, v18, vcc
    {POSC}
    v_lshlrev_b32 v17, 2, v17
    s_lshl_b32 s22, s23, 11                   ; chunk*2048
    buffer_store_dword v16, v17, s[12:15], s22 offen
    s_endpgm
    """)
    A("L_k1_wpk:")
    A(f"""
    s_cmp_ge_u32 s2, {K1_GRID - K1_TP}
    s_cbranch_scc1 L_k1_fill
    s_load_dwordx4 s[4:7], s[0:1], {KA_WR}    ; w_r, w_i
    s_sub_u32 s20, s2, {K1_FFT + K1_MOD + K1_PF}
    s_and_b32 s21, s20, 31                    ; p
    s_lshr_b32 s22, s20, 5                    ; cls
    s_sub_u32 s23, 0, s21
    s_bitcmp1_b32 s22, 0
    s_cselect_b32 s23, s23, s21               ; +-p
    s_add_u32 s24, s22, 1
    s_lshr_b32 s24, s24, 1
    s_lshl_b32 s24, s24, 6
    s_add_u32 s23, s23, s24                   ; residue
    s_cmp_eq_u32 s20, 64
    s_cselect_b32 s23, 32, s23
    s_cmp_eq_u32 s20, 96
    s_cselect_b32 s23, 96, s23
    s_mul_i32 s23, s23, 514
    v_lshrrev_b32 v1, 4, v0                   ; j = 0..15
    v_and_b32 v2, 15, v0
    v_mul_u32_u24 v1, {128*514}, v1
    v_min_u32 v2, 8, v2
    v_lshl_add_u32 v1, v2, 6, v1
    s_waitcnt lgkmcnt(0)
    """)
    WSZ = 2048 * 514
    srd(A, 8, 4, WSZ)
    srd(A, 12, 6, WSZ)
    A("""
    buffer_load_ushort v4, v1, s[8:11], s23 offen
    buffer_load_ushort v5, v1, s[12:15], s23 offen
    s_waitcnt vmcnt(0)
    s_endpgm
    """)
    A("L_k1_fill:")
    A(f"""
    s_cmp_ge_u32 s2, {K1_GRID}
    s_cbranch_scc1 L_k1_end
    s_load_dwordx4 s[4:7], s[0:1], {KA_WG}
    s_load_dwordx2 s[16:17], s[0:1], {KA_WDN}
    s_sub_u32 s21, s2, {K1_GRID - K1_TP}
    s_lshl_b32 s21, s21, 15
    v_lshlrev_b32 v1, 7, v0
    s_waitcnt lgkmcnt(0)
    """)
    if WPF & 1:
        srd(A, 8, 16, 1376 * 1024)
        A("buffer_load_dword v4, v1, s[8:11], s21 offen")
    if WPF & 2:
        srd(A, 8, 4, 1376 * 1024)
        srd(A, 12, 6, 1376 * 1024)
        A("buffer_load_dword v5, v1, s[8:11], s21 offen")
        A("buffer_load_dword v6, v1, s[12:15], s21 offen")
    A("s_waitcnt vmcnt(0)")
    A("s_endpgm")
    A("L_k1_pf:")
    A(f"""
    s_cmp_ge_u32 s2, {K1_FFT + K1_MOD + K1_PF}
    s_cbranch_scc1 L_k1_wpk
    s_getpc_b64 s[4:5]
    L_k1_pc:
    s_add_u32 s4, s4, {pf_start_label}-L_k1_pc
    s_addc_u32 s5, s5, 0
    v_lshlrev_b32 v1, 4, v0
    """)
    n = (pf_bytes + 4095) // 4096
    for i in range(n):
        A(f"global_load_dwordx4 v[4:7], v1, s[4:5]")
        if i + 1 < n:
            A("v_add_u32 v1, 0x1000, v1")
    if int(os.environ.get('K1_TLB', '1')):
        A(f"""
        s_load_dwordx4 s[4:7], s[0:1], {KA_WG}
        s_load_dwordx2 s[16:17], s[0:1], {KA_WDN}
        s_load_dwordx2 s[18:19], s[0:1], {KA_OUT}
        s_load_dwordx2 s[20:21], s[0:1], {KA_WS}
        v_lshlrev_b32 v1, 16, v0
        s_waitcnt lgkmcnt(0)
        """)
        for base, size in ((4, 1376 * 1024), (6, 1376 * 1024), (16, 1376 * 1024), (18, 2097152), (20, WS_END)):
            srd(A, 8, base, size)
            A("buffer_load_dword v4, v1, s[8:11], 0 offen")
        A("s_mov_b32 s22, 0x1000000")
        A("buffer_load_dword v4, v1, s[8:11], s22 offen")
    A("s_waitcnt vmcnt(0)")
    A("L_k1_end:")
    A("s_endpgm")
    return descriptor(name, 208, 100, 208)
```

```python
from asmlib import *
from layout import *

K1_FFT = 128
K1_MOD = 96
INL = int(os.environ.get('K1_INL', '0'))
K1_WPK = 0 if INL else 128
WPF = int(os.environ.get('K1_WPF', '1'))
K1_TP = 48 if WPF and not INL else 0
K1_PF = 8
K1_GRID = K1_FFT + K1_MOD + K1_WPK + K1_TP + K1_PF
K1_LDS = 4096 + 32 * 528

POSC = "" if os.environ.get('K3V', '7') != '4' else """
    v_and_b32 v20, 0x183, v17
    v_bfe_u32 v19, v17, 2, 1
    v_lshl_add_u32 v20, v19, 6, v20
    v_bfe_u32 v19, v17, 3, 4
    v_lshl_add_u32 v20, v19, 2, v20
    s_cmp_eq_u32 s23, 2
    s_cselect_b64 vcc, -1, 0
    v_cndmask_b32 v17, v17, v20, vcc
"""

XL3 = int(os.environ.get('K1_XL3', '4'))

def gen_k1(A, name, pf_start_label, pf_bytes):
    kernel_header(A, name)
    A(f"""
    s_getpc_b64 s[40:41]
    v_lshlrev_b32 v1, 5, v0
    global_load_dword v200, v1, s[40:41]
    s_cmp_ge_u32 s2, {K1_FFT}
    s_cbranch_scc1 L_k1_side
    s_load_dwordx2 s[4:5], s[0:1], {KA_X}
    s_load_dwordx2 s[6:7], s[0:1], {KA_WS}
    s_load_dwordx4 s[44:47], s[0:1], {KA_WR}
    s_load_dwordx2 s[42:43], s[0:1], {KA_WDN}
    """)
    stamp(A, 'k1', 0)
    A("""
    s_and_b32 s20, s2, 31
    s_lshr_b32 s21, s2, 5
    v_and_b32 v1, 15, v0            ; m / n
    v_bfe_u32 v2, v0, 4, 2          ; g
    v_lshrrev_b32 v3, 6, v0         ; w
    v_lshlrev_b32 v4, 18, v2
    v_lshl_add_u32 v4, v3, 8, v4
    v_lshl_add_u32 v4, v1, 4, v4    ; g*256K + w*256 + m*16
    s_lshl_b32 s22, s20, 10
    s_waitcnt lgkmcnt(0)
    """)
    stamp(A, 'k1', 1)
    srd(A, 8, 4, 2097152)
    L = lambda kk, i: 16 + (kk * 8 + i) * 4
    def xload(q):
        A(f"""
        s_add_u32 s28, s21, {q}
        s_and_b32 s{30+q}, s28, 3
        s_lshr_b32 s29, s{30+q}, 1
        s_lshl_b32 s29, s29, 20
        s_and_b32 s28, s28, 1
        s_lshl_b32 s28, s28, 17
        s_add_u32 s28, s28, s29
        s_add_u32 s28, s28, s22
        """)
        for i in range(4):
            if i: A(f"s_add_u32 s28, s28, 32768")
            A(f"buffer_load_dwordx4 {v(16 + (q*4+i)*4, 4)}, v4, s[8:11], s28 offen")
    xload(0); xload(1)
    srd(A, 12, 6, SZ_ABUF, WS_ABUF)
    stamp(A, 'k1', 2)
    FC = lambda nt, c, kk: 128 + ((nt * 2 + c) * 2 + kk) * 4
    CS, SN = 160, 168
    A(f"""
    v_cvt_f32_u32 v5, v1
    v_mul_f32 v5, {fl(1/64)}, v5            ; n/64
    v_lshlrev_b32 v6, 3, v2
    v_cvt_f32_u32 v6, v6                     ; 8g
    v_mul_f32 v6, v5, v6                     ; n*8g/64
    """)
    for i in range(8):
        if i % 4 == 0:
            q = i // 4
            A(f"""
            s_lshr_b32 s28, s{30+q}, 1
            s_lshl_b32 s28, s28, 5
            s_and_b32 s29, s{30+q}, 1
            s_lshl_b32 s29, s29, 2
            s_add_u32 s28, s28, s29
            v_cvt_f32_u32 v7, s28
            v_fma_f32 v7, v7, v5, v6
            """)
        else:
            A(f"v_add_f32 v7, v7, v5")
        A(f"v_cos_f32 v{CS+i}, v7")
        A(f"v_sin_f32 v{SN+i}, v7")
    def term(kind, i):
        c_, s_ = f"v{CS+i}", f"v{SN+i}"
        return {'c': c_, '-c': '-' + c_, 's': s_, '-s': '-' + s_}[kind]
    tab = {(0, 0): ['c'] * 4, (0, 1): ['-s'] * 4,
           (1, 0): ['c', '-s', '-c', 's'], (1, 1): ['-s', '-c', 's', 'c']}
    for nt in range(2):
        for c in range(2):
            for d in range(4):
                i0, i1 = 2 * d, 2 * d + 1
                A(f"v_cvt_pk_bf16_f32 v{FC(nt,c,0)+d}, {term(tab[(nt,c)][i0%4], i0)}, {term(tab[(nt,c)][i1%4], i1)}")
    A("""
    v_cmp_eq_u32 vcc, 0, v1
    v_mov_b32 v8, 0xbf803f80
    v_and_b32 v9, 1, v1
    v_sub_u32 v9, 0, v9
    v_and_b32 v9, 0x80008000, v9
    """)
    for d in range(4):
        A(f"v_cndmask_b32 v{FC(0,1,0)+d}, v{FC(0,1,0)+d}, v8, vcc")
    for nt in range(2):
        for c in range(2):
            for d in range(4):
                A(f"v_xor_b32 v{FC(nt,c,1)+d}, v9, v{FC(nt,c,0)+d}")
    S0, Q0 = 80, 96
    for k in range(16):
        A(f"v_mov_b64 v[{S0+2*k}:{S0+2*k+1}], 0")
    A("s_mov_b32 s24, 0x3f803f80")
    A("s_mov_b32 s25, 0xffff0000")
    A("""
    v_bfe_u32 v10, v0, 3, 1                 ; b3 = stat
    v_bfe_u32 v11, v0, 2, 1                 ; b2 = kk
    v_lshlrev_b32 v10, 8, v10
    v_lshl_add_u32 v10, v3, 9, v10          ; w*512 + st*256
    v_lshl_add_u32 v10, v11, 7, v10         ; + kk*128
    v_lshl_add_u32 v10, v2, 5, v10
    v_and_b32 v11, 63, v0
    v_lshlrev_b32 v11, 2, v11
    v_lshl_add_u32 v12, v3, 9, v11          ; w*512 + lane*4 (+2048): rs write addr
    v_lshlrev_b32 v13, 9, v3
    v_lshl_add_u32 v13, v2, 5, v13          ; w*512 + g*32 (+2048): rs read addr
    ; staging: row stride 528 B (512 + 16 pad): write n*528 + (4w+g)*16
    v_mul_u32_u24 v14, 528, v1
    v_lshl_add_u32 v15, v3, 2, v2
    v_lshl_add_u32 v14, v15, 4, v14
    v_bfe_u32 v112, v0, 5, 1
    v_lshl_add_u32 v112, v3, 3, v112        ; row (k = 0)
    v_and_b32 v113, 31, v0
    v_mul_u32_u24 v15, 528, v112
    v_lshl_add_u32 v15, v113, 4, v15
    v_lshlrev_b32 v112, 16, v112
    v_lshl_add_u32 v112, v113, 4, v112
    s_lshl_b32 s26, s20, 11
    s_lshl_b32 s27, s21, 9
    s_add_u32 s26, s26, s27                 ; s2*2048 + p*512
    s_add_u32 s27, s26, 0x100000
    """)
    stamp(A, 'k1', 3)
    r1a = lambda k: f"v_add_f32_dpp v{S0+k}, v{S0+k}, v{S0+k} row_ror:8 row_mask:0xf bank_mask:0x3"
    r1b = lambda k: f"v_add_f32_dpp v{S0+k}, v{Q0+k}, v{Q0+k} row_ror:8 row_mask:0xf bank_mask:0xc"
    r2a = lambda k: f"v_add_f32_dpp v{S0+k}, v{S0+k}, v{S0+k} row_shl:4 row_mask:0xf bank_mask:0x5"
    r2b = lambda k: f"v_add_f32_dpp v{S0+k}, v{S0+8+k}, v{S0+8+k} row_shr:4 row_mask:0xf bank_mask:0xa"
    r3 = lambda k: f"v_add_f32_dpp v{S0+k}, v{S0+k}, v{S0+k} quad_perm:[1,0,3,2] row_mask:0xf bank_mask:0xf"
    r4 = lambda k: f"v_add_f32_dpp v{S0+k}, v{S0+k}, v{S0+k} quad_perm:[2,3,0,1] row_mask:0xf bank_mask:0xf"
    def lagged(k):
        o = []
        if 0 <= k - 1 < 16: o.append(r1a(k - 1))
        if 0 <= k - 2 < 16: o.append(r1b(k - 2))
        if 0 <= k - 3 < 8: o.append(r2a(k - 3))
        if 0 <= k - 11 < 8: o.append(r2b(k - 11))
        if 0 <= k - 12 < 8: o.append(r3(k - 12))
        if 0 <= k - 13 < 8: o.append(r4(k - 13))
        return o
    for k in range(21):
        if k < 16:
            if k == 0: xload(2)
            if k == XL3: xload(3)
            if k == 1: stamp(A, 'k1', 4)
            for j_ in range(4):
                A(f"v_dot2c_f32_bf16 v{S0+k}, s24, v{16+4*k+j_}")
                A(f"v_dot2c_f32_bf16 v{Q0+k}, v{16+4*k+j_}, v{16+4*k+j_}")
        A.ext(lagged(k))
        if INL and k == int(os.environ.get('K1_INLK', '12')):
            A(f"""
            s_sub_u32 s48, 0, s20
            s_bitcmp1_b32 s21, 0
            s_cselect_b32 s48, s48, s20
            s_add_u32 s49, s21, 1
            s_lshr_b32 s49, s49, 1
            s_lshl_b32 s49, s49, 6
            s_add_u32 s48, s48, s49
            s_cmp_eq_u32 s2, 64
            s_cselect_b32 s48, 32, s48
            s_cmp_eq_u32 s2, 96
            s_cselect_b32 s48, 96, s48
            s_mul_i32 s48, s48, 514
            v_lshrrev_b32 v114, 4, v0
            v_mul_u32_u24 v114, {128*514}, v114
            v_min_u32 v115, 8, v1
            v_lshl_add_u32 v114, v115, 6, v114
            v_lshlrev_b32 v115, 7, v0
            s_lshl_b32 s49, s2, 15
            """)
            srd(A, 52, 44, 2048 * 514)
            A("buffer_load_ushort v116, v114, s[52:55], s48 offen")
            srd(A, 52, 46, 2048 * 514)
            A("buffer_load_ushort v117, v114, s[52:55], s48 offen")
            srd(A, 52, 42, 1376 * 1024)
            A("buffer_load_dword v118, v115, s[52:55], s49 offen")
    stamp(A, 'k1', 5)
    A(f"ds_write_b128 v10, v[{S0}:{S0+3}]")
    A(f"ds_write_b128 v10, v[{S0+4}:{S0+7}] offset:16")
    A("""
    s_waitcnt lgkmcnt(0)
    s_barrier
    ds_read2st64_b32 v[96:97], v11 offset0:0 offset1:1
    ds_read2st64_b32 v[98:99], v11 offset0:2 offset1:3
    ds_read2st64_b32 v[100:101], v11 offset0:4 offset1:5
    ds_read2st64_b32 v[102:103], v11 offset0:6 offset1:7
    """)
    T = lambda e, k: 176 + e * 16 + k
    for p in range(4):
        if p < 3:
            A(f"s_cmp_lg_u32 s21, {p}")
            A(f"s_cbranch_scc1 L_k1_p{p+1}")
        for k in range(16):
            A(f"v_lshlrev_b32 v{T(0,k)}, 16, v{16+4*k+p}")
            A(f"v_and_b32 v{T(1,k)}, s25, v{16+4*k+p}")
        if p < 3:
            A("s_branch L_k1_pdone")
            A(f"L_k1_p{p+1}:")
    A("L_k1_pdone:")
    stamp(A, 'k1', 6)
    A("""
    s_waitcnt lgkmcnt(0)
    v_pk_add_f32 v[96:97], v[96:97], v[98:99]
    v_pk_add_f32 v[100:101], v[100:101], v[102:103]
    v_pk_add_f32 v[96:97], v[96:97], v[100:101]
    """)
    A(f"""
    v_mul_f32 v96, {fl(1/512)}, v96          ; mean
    v_mul_f32 v97, {fl(1/512)}, v97          ; E[x^2]
    v_fma_f32 v97, -v96, v96, v97
    v_max_f32 v97, 0, v97
    v_add_f32 v97, {fl(1e-5)}, v97
    v_rsq_f32 v97, v97
    v_mul_f32 v96, -1.0, v96
    v_mul_f32 v96, v96, v97                  ; -mean*rstd
    ds_write2st64_b32 v12, v97, v96 offset0:8 offset1:9
    s_waitcnt lgkmcnt(0)
    """)
    for kk in range(2):
        for h in range(2):
            A(f"ds_read_b128 v[{80+kk*8+h*4}:{80+kk*8+h*4+3}], v13 offset:{2048 + kk*128 + h*16}")
            A(f"ds_read_b128 v[{96+kk*8+h*4}:{96+kk*8+h*4+3}], v13 offset:{2048 + 256 + kk*128 + h*16}")
    stamp(A, 'k1', 7)
    DF = lambda e, kk: 16 + (e * 2 + kk) * 4
    ACC = lambda e, nt, c: 32 + ((e * 2 + nt) * 2 + c) * 4
    for kk in range(2):
        A(f"s_waitcnt lgkmcnt({4 if kk == 0 else 0})")
        for e in range(2):
            for d in range(4):
                k = kk * 8 + 2 * d
                A(f"v_pk_fma_f32 v[{T(e,k)}:{T(e,k)+1}], v[{T(e,k)}:{T(e,k)+1}], v[{80+k}:{81+k}], v[{96+k}:{97+k}]")
    P = []
    for e in range(2):
        for kk in range(2):
            for d in range(4):
                k = kk * 8 + 2 * d
                P.append(f"v_cvt_pk_bf16_f32 v{DF(e,kk)+d}, v{T(e,k)}, v{T(e,k)+1}")
        for nt in range(2):
            for kk in range(2):
                for c in range(2):
                    cin = "0" if kk == 0 else v(ACC(e, nt, c), 4)
                    P.append(f"v_mfma_f32_16x16x32_bf16 {v(ACC(e,nt,c),4)}, {v(DF(e,kk),4)}, {v(FC(nt,c,kk),4)}, {cin}")
    for e in range(2):
        for nt in range(2):
            o = 64 + (e * 2 + nt) * 4
            for r in range(4):
                P.append(f"v_cvt_pk_bf16_f32 v{o+r}, v{ACC(e,nt,0)+r}, v{ACC(e,nt,1)+r}")
            P.append(f"ds_write_b128 v14, {v(o,4)} offset:{4096 + nt*16*528 + e*256}")
    A.ext(schedule(P))
    A("s_waitcnt lgkmcnt(0)")
    A("s_barrier")
    for k in range(4):
        A(f"ds_read_b128 {v(64+4*k,4)}, v15 offset:{4096 + k*2*528}")
    for k in range(4):
        A(f"s_waitcnt lgkmcnt({3-k})")
        A(f"buffer_store_dwordx4 {v(64+4*k,4)}, v112, s[12:15], s26 offen")
        if k < 3: A("s_add_u32 s26, s26, 0x20000")
    stamp(A, 'k1', 8)
    dump_stamps(A, 'k1', 9, 6, 4, vt=2)
    A("s_endpgm")

    A("L_k1_side:")
    A(f"""
    s_cmp_ge_u32 s2, {K1_FFT + K1_MOD}
    s_cbranch_scc1 L_k1_pf
    s_load_dwordx4 s[4:7], s[0:1], {KA_C}     ; c, w_mod
    s_load_dwordx2 s[16:17], s[0:1], {KA_WS}
    s_sub_u32 s20, s2, {K1_FFT}
    s_and_b32 s21, s20, 7
    s_lshr_b32 s22, s20, 4
    s_lshl_b32 s22, s22, 3
    s_add_u32 s21, s21, s22
    s_lshl_b32 s21, s21, 1
    s_bfe_u32 s22, s20, 0x10003
    s_add_u32 s21, s21, s22                   ; cg 0..95
    v_and_b32 v1, 3, v0                       ; cq
    v_lshrrev_b32 v2, 2, v0                   ; rg 0..63
    v_mul_u32_u24 v3, 6144, v2
    v_lshl_add_u32 v3, v1, 4, v3
    v_lshlrev_b32 v4, 1, v2
    s_lshl_b32 s22, s21, 6
    s_waitcnt lgkmcnt(0)
    """)
    srd(A, 8, 6, 512 * 6144)
    srd(A, 12, 4, 1024)
    for j in range(8):
        A(f"buffer_load_ushort v{8+j}, v4, s[12:15], 0 offen offset:{j*128}")
    for j in range(8):
        A(f"s_add_u32 s23, s22, {j * 64 * 6144}")
        A(f"buffer_load_dwordx4 {v(16+4*j,4)}, v3, s[8:11], s23 offen")
    srd(A, 12, 16, SZ_MOD, WS_MOD)
    A("s_mov_b32 s25, 0xffff0000")
    A("s_waitcnt vmcnt(8)")
    for j in range(8):
        A(f"v_lshlrev_b32 v{8+j}, 16, v{8+j}")
        A(f"v_mul_f32 v{48+j}, {fl(-1.4426950408889634)}, v{8+j}")
        A(f"v_exp_f32 v{48+j}, v{48+j}")
    for j in range(8):
        A(f"v_add_f32 v{48+j}, 1.0, v{48+j}")
        A(f"v_rcp_f32 v{48+j}, v{48+j}")
    for j in range(8):
        A(f"v_mul_f32 v{8+j}, v{8+j}, v{48+j}")
        A(f"v_cvt_pk_bf16_f32 v{8+j}, v{8+j}, v{8+j}")
        A(f"v_and_b32 v{8+j}, s25, v{8+j}")
    for j in range(8):
        A(f"s_waitcnt vmcnt({7-j})")
        for q in range(4):
            A(f"v_lshlrev_b32 v56, 16, v{16+4*j+q}")
            A(f"v_and_b32 v57, s25, v{16+4*j+q}")
            if j == 0:
                A(f"v_mul_f32 v{48+2*q}, v56, v{8+j}")
                A(f"v_mul_f32 v{49+2*q}, v57, v{8+j}")
            else:
                A(f"v_fmac_f32 v{48+2*q}, v56, v{8+j}")
                A(f"v_fmac_f32 v{49+2*q}, v57, v{8+j}")
    for rot in (4, 8):
        for q in range(8):
            A(f"v_add_f32_dpp v{48+q}, v{48+q}, v{48+q} row_ror:{rot} row_mask:0xf bank_mask:0xf")
    A("""
    v_lshrrev_b32 v5, 4, v0
    v_lshlrev_b32 v5, 7, v5
    v_lshl_add_u32 v5, v1, 5, v5              ; row*128 + cq*32
    ds_write_b128 v5, v[48:51]
    ds_write_b128 v5, v[52:55] offset:16
    v_lshlrev_b32 v6, 2, v0
    s_waitcnt lgkmcnt(0)
    s_barrier
    v_cmp_gt_u32 vcc, 32, v0
    s_and_saveexec_b64 s[26:27], vcc
    s_cbranch_execz L_k1_end
    """)
    for k in range(8):
        A(f"ds_read2_b32 v[{16+2*k}:{17+2*k}], v6 offset0:{64*k} offset1:{64*k+32}") if 64*k+32 < 256 else \
            A(f"ds_read2_b32 v[{16+2*k}:{17+2*k}], v7 offset0:{64*(k-4)} offset1:{64*(k-4)+32}")
        if k == 0:
            A("v_add_u32 v7, 1024, v6")
    A("s_waitcnt lgkmcnt(0)")
    for k in (4, 2, 1):
        for q in range(k):
            A(f"v_pk_add_f32 v[{16+2*q}:{17+2*q}], v[{16+2*q}:{17+2*q}], v[{16+2*(q+k)}:{17+2*(q+k)}]")
    A(f"""
    v_add_f32 v16, v16, v17
    v_cvt_pk_bf16_f32 v16, v16, v16
    v_and_b32 v16, s25, v16
    s_lshr_b32 s23, s21, 4
    s_cmp_eq_u32 s23, 1
    s_cselect_b32 s24, 1.0, 0
    s_cmp_eq_u32 s23, 4
    s_cselect_b32 s24, 1.0, s24
    v_add_f32 v16, s24, v16
    v_cvt_pk_bf16_f32 v16, v16, v16
    v_and_b32 v16, s25, v16
    s_and_b32 s22, s21, 15
    s_lshl_b32 s22, s22, 5
    v_add_u32 v17, s22, v0                    ; d
    v_and_b32 v18, 7, v17
    v_lshlrev_b32 v18, 6, v18
    v_lshrrev_b32 v19, 7, v17
    v_lshl_add_u32 v18, v19, 4, v18
    v_bfe_u32 v19, v17, 3, 2
    v_lshl_add_u32 v18, v19, 2, v18
    v_bfe_u32 v20, v17, 5, 2
    v_add_u32 v18, v18, v20                   ; posA
    s_cmp_lt_u32 s23, 2
    s_cselect_b64 vcc, -1, 0
    v_cndmask_b32 v17, v17, v18, vcc
    {POSC}
    v_lshlrev_b32 v17, 2, v17
    s_lshl_b32 s22, s23, 11                   ; chunk*2048
    buffer_store_dword v16, v17, s[12:15], s22 offen
    s_endpgm
    """)
    A("L_k1_wpk:")
    A(f"""
    s_cmp_ge_u32 s2, {K1_GRID - K1_TP}
    s_cbranch_scc1 L_k1_fill
    s_load_dwordx4 s[4:7], s[0:1], {KA_WR}    ; w_r, w_i
    s_sub_u32 s20, s2, {K1_FFT + K1_MOD + K1_PF}
    s_and_b32 s21, s20, 31                    ; p
    s_lshr_b32 s22, s20, 5                    ; cls
    s_sub_u32 s23, 0, s21
    s_bitcmp1_b32 s22, 0
    s_cselect_b32 s23, s23, s21               ; +-p
    s_add_u32 s24, s22, 1
    s_lshr_b32 s24, s24, 1
    s_lshl_b32 s24, s24, 6
    s_add_u32 s23, s23, s24                   ; residue
    ; p == 0: classes 2,3 would repeat 64 / 128 -> use 32 and 96 (unit 32 lives on XCD 0)
    s_cmp_eq_u32 s20, 64
    s_cselect_b32 s23, 32, s23
    s_cmp_eq_u32 s20, 96
    s_cselect_b32 s23, 96, s23
    s_mul_i32 s23, s23, 514
    v_lshrrev_b32 v1, 4, v0                   ; j = 0..15
    v_and_b32 v2, 15, v0
    v_mul_u32_u24 v1, {128*514}, v1
    v_min_u32 v2, 8, v2
    v_lshl_add_u32 v1, v2, 6, v1
    s_waitcnt lgkmcnt(0)
    """)
    WSZ = 2048 * 514
    srd(A, 8, 4, WSZ)
    srd(A, 12, 6, WSZ)
    A("""
    buffer_load_ushort v4, v1, s[8:11], s23 offen
    buffer_load_ushort v5, v1, s[12:15], s23 offen
    s_waitcnt vmcnt(0)
    s_endpgm
    """)
    A("L_k1_fill:")
    A(f"""
    s_cmp_ge_u32 s2, {K1_GRID}
    s_cbranch_scc1 L_k1_end
    s_load_dwordx4 s[4:7], s[0:1], {KA_WG}
    s_load_dwordx2 s[16:17], s[0:1], {KA_WDN}
    s_sub_u32 s21, s2, {K1_GRID - K1_TP}
    s_lshl_b32 s21, s21, 15
    v_lshlrev_b32 v1, 7, v0
    s_waitcnt lgkmcnt(0)
    """)
    if WPF & 1:
        srd(A, 8, 16, 1376 * 1024)
        A("buffer_load_dword v4, v1, s[8:11], s21 offen")
    if WPF & 2:
        srd(A, 8, 4, 1376 * 1024)
        srd(A, 12, 6, 1376 * 1024)
        A("buffer_load_dword v5, v1, s[8:11], s21 offen")
        A("buffer_load_dword v6, v1, s[12:15], s21 offen")
    A("s_waitcnt vmcnt(0)")
    A("s_endpgm")
    A("L_k1_pf:")
    A(f"""
    s_cmp_ge_u32 s2, {K1_FFT + K1_MOD + K1_PF}
    s_cbranch_scc1 L_k1_wpk
    s_getpc_b64 s[4:5]
    L_k1_pc:
    s_add_u32 s4, s4, {pf_start_label}-L_k1_pc
    s_addc_u32 s5, s5, 0
    v_lshlrev_b32 v1, 4, v0
    """)
    n = (pf_bytes + 4095) // 4096
    for i in range(n):
        A(f"global_load_dwordx4 v[4:7], v1, s[4:5]")
        if i + 1 < n:
            A("v_add_u32 v1, 0x1000, v1")
    if int(os.environ.get('K1_TLB', '0')):
        A(f"""
        s_load_dwordx4 s[4:7], s[0:1], {KA_WG}
        s_load_dwordx2 s[16:17], s[0:1], {KA_WDN}
        s_load_dwordx2 s[18:19], s[0:1], {KA_OUT}
        s_load_dwordx2 s[20:21], s[0:1], {KA_WS}
        v_lshlrev_b32 v1, 16, v0
        s_waitcnt lgkmcnt(0)
        """)
        for base, size in ((4, 1376 * 1024), (6, 1376 * 1024), (16, 1376 * 1024), (18, 2097152), (20, WS_END)):
            srd(A, 8, base, size)
            A("buffer_load_dword v4, v1, s[8:11], 0 offen")
        A("s_mov_b32 s22, 0x1000000")
        A("buffer_load_dword v4, v1, s[8:11], s22 offen")
    A("s_waitcnt vmcnt(0)")
    A("L_k1_end:")
    A("s_endpgm")
    return descriptor(name, 208, 100, 208)
```

```python
import re, struct

def f32bits(x):
    return struct.unpack('<I', struct.pack('<f', x))[0]
def fl(x):
    return "0x%08x" % f32bits(x)

REG_RE = re.compile(r'\b([vas])(\d+)\b|\b([vas])\[(\d+):(\d+)\]|\b(vcc|exec|m0|scc)\b')

def regs_of(op):
    out = []
    for m in REG_RE.finditer(op):
        if m.group(1):
            out.append((m.group(1), int(m.group(2))))
        elif m.group(3):
            out += [(m.group(3), i) for i in range(int(m.group(4)), int(m.group(5)) + 1)]
        else:
            out.append((m.group(6), 0))
    return out

def split_ops(s):
    ops, depth, cur = [], 0, ''
    for ch in s:
        if ch == '[': depth += 1
        if ch == ']': depth -= 1
        if ch == ',' and depth == 0:
            ops.append(cur.strip()); cur = ''
        else:
            cur += ch
    if cur.strip(): ops.append(cur.strip())
    return ops

TRANS = ('v_exp_f32', 'v_log_f32', 'v_rcp_f32', 'v_rsq_f32', 'v_sqrt_f32', 'v_sin_f32', 'v_cos_f32', 'v_rcp_iflag_f32')

class Ins:
    def __init__(self, text):
        self.text = text
        t = text.split(';')[0].strip()
        self.label = t.endswith(':') or t.startswith('.') or t == ''
        self.kind = None
        self.w, self.r = [], []
        self.states = 1
        if self.label:
            self.states = 0
            return
        parts = t.split(None, 1)
        op = parts[0]; rest = parts[1] if len(parts) > 1 else ''
        self.op = op
        ops = split_ops(rest)
        if ops:
            last = ops[-1].split()
            self.mods = ' '.join(last[1:])
            ops[-1] = last[0] if last else ''
        else:
            self.mods = ''
        self.ops = ops
        R = [regs_of(o) for o in ops]
        if op == 's_nop':
            self.kind = 'nop'; self.states = int(ops[0], 0) + 1
        elif op.startswith('v_mfma'):
            self.kind = 'mfma'
            self.D, self.A, self.B, self.C = R[0], R[1], R[2], R[3]
            self.w = R[0]; self.r = R[1] + R[2] + R[3]
            self.passes = 8 if '32x32' in op else 4
        elif op.startswith('v_'):
            self.kind = 'valu'
            self.trans = op.replace('_e32', '').replace('_e64', '') in TRANS
            self.dpp = ('dpp' in op) or ('quad_perm' in self.mods) or ('row_' in self.mods)
            self.dot = op.startswith('v_dot')
            self.perml = op.startswith('v_permlane')
            self.rdl = op.startswith('v_readlane') or op.startswith('v_readfirstlane')
            if self.perml or op.startswith('v_swap'):
                self.w = R[0] + R[1]; self.r = R[0] + R[1]
            elif op.startswith(('v_add_co', 'v_sub_co', 'v_subrev_co', 'v_addc_co', 'v_subb_co', 'v_mad_u64', 'v_div_scale')):
                self.w = R[0] + R[1]; self.r = sum(R[2:], [])
            else:
                self.w = R[0]; self.r = sum(R[1:], [])
                if op.startswith(('v_fmac', 'v_dot2c', 'v_pk_fmac', 'v_writelane')) or self.dpp:
                    self.r = self.r + R[0]
                if op.startswith('v_cndmask') and len(ops) == 3:
                    self.r.append(('vcc', 0))
        elif op.startswith(('buffer_', 'global_', 'flat_')):
            self.kind = 'vmem'
            self.lds = ' lds' in (' ' + self.mods)
            isstore = 'store' in op or ('atomic' in op)
            self.wide = isstore and (op.endswith('x4') or op.endswith('x3'))
            if isstore or self.lds:
                self.r = sum(R, [])
                self.data = R[0] if op.startswith('buffer_') else R[1]
                if self.lds: self.r.append(('m0', 0))
                if 'atomic' in op and 'sc0' in self.mods:
                    self.w = R[0]
            else:
                self.w = R[0]; self.r = sum(R[1:], [])
                if 'd16' in op: self.r = self.r + R[0]
        elif op.startswith('ds_'):
            self.kind = 'ds'
            if op.startswith(('ds_read', 'ds_bpermute', 'ds_permute', 'ds_swizzle')) or '_rtn' in op:
                self.w = R[0]; self.r = sum(R[1:], [])
            else:
                self.r = sum(R, [])
        elif op.startswith('s_'):
            self.kind = 'salu'
            if op.startswith(('s_cmp', 's_cbranch', 's_branch', 's_waitcnt', 's_barrier', 's_endpgm', 's_setprio', 's_sleep', 's_bitcmp')):
                self.r = sum(R, [])
            else:
                self.w = R[0] if R else []; self.r = sum(R[1:], [])
                if 'saveexec' in op: self.w = self.w + [('exec', 0)]
        else:
            raise ValueError("unknown instr: " + text)

def ov(a, b):
    return bool(set(a) & set(b))

def need(p, c):
    n = 0
    isS = lambda regs: [x for x in regs if x[0] in ('s', 'vcc')]
    isV = lambda regs: [x for x in regs if x[0] in ('v', 'a')]
    if p.kind == 'valu':
        pw = isV(p.w); ps = isS(p.w)
        if c.kind == 'mfma' and ov(pw, c.r): n = max(n, 2)
        if c.kind == 'valu':
            if p.trans and not c.trans and ov(pw, c.r): n = max(n, 1)
            if p.trans and c.trans and ov(pw, c.r): n = max(n, 1)
            if c.dpp and ov(pw, c.r): n = max(n, 2)
            if c.rdl and ov(pw, c.r): n = max(n, 1)
            if c.perml and ov(pw, c.r): n = max(n, 2)
            if ov(ps, c.r): n = max(n, 4 if c.rdl or c.op.startswith('v_writelane') else 2)
            if p.dot:
                same = c.op == p.op
                if same:
                    srcab = [x for x in c.r if x not in c.w] if c.op.startswith('v_dot2c') else regs_of(c.ops[1]) + regs_of(c.ops[2])
                    if ov(pw, srcab): n = max(n, 3)
                elif ov(pw, c.r + c.w): n = max(n, 3)
            if ('sdwa' in p.op or 'op_sel' in p.mods and not p.op.startswith('v_pk')) and ov(pw, c.r + c.w): n = max(n, 1)
        if p.dot and c.kind in ('vmem', 'ds', 'mfma') and ov(pw, c.r + c.w): n = max(n, 3)
        if p.trans and c.kind in ('vmem', 'ds') and ov(pw, c.r): n = max(n, 1)
        if c.kind == 'vmem' and ov(ps, c.r): n = max(n, 5)
        if c.kind == 'salu' and ov(ps, c.r): n = max(n, 3)
        if ('exec', 0) in p.w: n = max(n, 5)
    elif p.kind == 'mfma':
        big = {4: 8, 8: 12}[p.passes]; part = {4: 6, 8: 10}[p.passes]; war = {4: 3, 8: 7}[p.passes]
        if c.kind == 'mfma':
            if ov(p.D, c.A + c.B): n = max(n, big)
            if ov(p.D, c.C) and not (p.D == c.C and p.passes == c.passes): n = max(n, part)
            if ov(p.D, c.D) and p.D != c.D: n = max(n, part)
        elif c.kind in ('valu', 'vmem', 'ds'):
            if ov(p.D, c.r + c.w): n = max(n, big)
            if c.kind == 'valu' and ov(p.C, c.w): n = max(n, war)
            if c.kind in ('vmem', 'ds') and ov(p.C, c.w): n = max(n, war)
    elif p.kind == 'vmem':
        if getattr(p, 'wide', False) and ov(p.data, c.w):
            n = max(n, 2)
    elif p.kind == 'ds':
        if p.op in ('ds_write_b128', 'ds_write_b96') and c.kind == 'valu' and ov(p.r, c.w):
            n = max(n, 1)
    elif p.kind == 'salu':
        if ('m0', 0) in p.w and ('m0', 0) in c.r: n = max(n, 1)
    return n

def pad(lines):
    out = []
    hist = []
    pos = 0
    for t in lines:
        ins = Ins(t)
        if ins.label:
            out.append(t); continue
        req = 0
        for (p, pp) in hist:
            gap = pos - pp
            req = max(req, need(p, ins) - gap)
        while req > 0:
            k = min(req, 16)
            out.append("    s_nop %d" % (k - 1)); pos += k; req -= k
        out.append(t)
        pos += ins.states
        hist.append((ins, pos))
        hist = [(p, pp) for (p, pp) in hist if pos - pp < 20]
    return out

class Asm:
    def __init__(self):
        self.lines = []
    def __call__(self, s):
        for l in s.strip('\n').split('\n'):
            l = l.strip()
            if not l: continue
            if l.endswith(':') or l.startswith('.'):
                self.lines.append(l)
            else:
                self.lines.append('    ' + l)
    def comment(self, s):
        self.lines.append('    ; ' + s)
    def text(self):
        return '\n'.join(pad_keep_comments(resolve_waits(self.lines))) + '\n'
    def ext(self, lst):
        for l in lst: self(l)

def pad_keep_comments(lines):
    return pad(lines)

def v(i, n=1):
    return "v%d" % i if n == 1 else "v[%d:%d]" % (i, i + n - 1)
def a(i, n=1):
    return "a%d" % i if n == 1 else "a[%d:%d]" % (i, i + n - 1)
def s(i, n=1):
    return "s%d" % i if n == 1 else "s[%d:%d]" % (i, i + n - 1)

def srd(A, d, base, nbytes, off=0):
    if off:
        A(f"s_add_u32 s{d}, s{base}, {off}")
        A(f"s_addc_u32 s{d+1}, s{base+1}, 0")
    else:
        A(f"s_mov_b32 s{d}, s{base}")
        A(f"s_mov_b32 s{d+1}, s{base+1}")
    A(f"s_mov_b32 s{d+2}, {nbytes}")
    A(f"s_mov_b32 s{d+3}, 0x00020000")

def kernel_header(A, name):
    A(f".globl {name}")
    import os
    A(".p2align %s" % os.environ.get('KALIGN', '8'))
    pad_ = int(os.environ.get('PAD_' + name.split('_')[0].upper(), '0'))
    if pad_: A(f".fill {pad_ * 64}, 4, 0xbf800000")
    A(f".type {name},@function")
    A(f"{name}:")

def descriptor(name, vgpr, sgpr, accum):
    return f""".amdhsa_kernel {name}
  .amdhsa_next_free_vgpr {vgpr}
  .amdhsa_next_free_sgpr {sgpr}
  .amdhsa_accum_offset {accum}
  .amdhsa_group_segment_fixed_size 0
  .amdhsa_kernarg_size 96
  .amdhsa_user_sgpr_count 2
  .amdhsa_user_sgpr_kernarg_segment_ptr 1
  .amdhsa_system_sgpr_workgroup_id_x 1
.end_amdhsa_kernel
"""

import os
DIAG = os.environ.get('DIAG', '')
WS_DIAG = 0x4000000
def stamp(A, kern, idx):
    if kern in DIAG.split(','):
        A(f"s_memtime s[{60+2*idx}:{61+2*idx}]")
def dump_stamps(A, kern, n, ws_pair, nwaves, vt=250):
    if kern not in DIAG.split(','):
        return
    A("s_waitcnt lgkmcnt(0) vmcnt(0)")
    A(f"s_memtime s[{60+2*n}:{61+2*n}]")
    srd(A, 56, ws_pair, 1 << 20, WS_DIAG)
    A(f"v_lshrrev_b32 v{vt}, 6, v0")
    A(f"s_mul_i32 s55, s2, {nwaves}")
    A(f"v_add_u32 v{vt}, s55, v{vt}")
    A(f"v_lshlrev_b32 v{vt}, 6, v{vt}")
    A("s_waitcnt lgkmcnt(0)")
    for k in range(n + 1):
        A(f"v_mov_b32 v{vt+1}, s{60+2*k}")
        A(f"buffer_store_dword v{vt+1}, v{vt}, s[56:59], 0 offen offset:{4*k}")


def resolve_waits(lines):
    out = []
    VQ, LQ = [], []
    saved = {}
    waited = set()
    for l in lines:
        t = l.strip()
        if t.startswith(';@'):
            p = t[2:].split()
            if p[0] == 'save': saved[p[1]] = (list(VQ), list(LQ))
            elif p[0] == 'restore': VQ, LQ = list(saved[p[1]][0]), list(saved[p[1]][1]); waited = set()
            elif p[0] == 'restore2': VQ, LQ = list(saved[p[1]][0]), list(saved[p[1]][1])
            elif p[0] == 'reset': VQ, LQ = [], []
            elif p[0] in ('wv', 'wl'):
                Q = VQ if p[0] == 'wv' else LQ
                if p[0] == 'wv': waited.update(p[1:])
                idx = [i for i, x in enumerate(Q) if x in p[1:]]
                if idx:
                    n = len(Q) - 1 - max(idx)
                    lim = 63 if p[0] == 'wv' else 15
                    n = min(n, lim)
                    out.append(f"    s_waitcnt {'vmcnt' if p[0] == 'wv' else 'lgkmcnt'}({n})")
                    del Q[:len(Q) - n]
            else:
                raise ValueError(t)
            continue
        tag = None
        if ';@tag' in t:
            tag = t.split(';@tag')[1].split()[0]
            l = l.split(';@tag')[0].rstrip()
            t = l.strip()
        op = t.split()[0] if t and not t.startswith(';') else ''
        if op.startswith(('buffer_', 'global_')):
            if len(VQ) >= 63:
                out.append("    s_waitcnt vmcnt(62)")
                del VQ[:len(VQ) - 62]
            assert tag is None or tag not in waited, 'load issued after its wait: ' + t
            VQ.append(tag)
        elif op.startswith('ds_'):
            if len(LQ) >= 15:
                out.append("    s_waitcnt lgkmcnt(14)")
                del LQ[:len(LQ) - 14]
            LQ.append(tag)
        elif op == 's_waitcnt':
            m = re.search(r'vmcnt\((\d+)\)', t)
            if m and len(VQ) > int(m.group(1)): del VQ[:len(VQ) - int(m.group(1))]
            m = re.search(r'lgkmcnt\((\d+)\)', t)
            if m and len(LQ) > int(m.group(1)): del LQ[:len(LQ) - int(m.group(1))]
        elif op == 's_endpgm':
            VQ, LQ = [], []; waited = set()
        out.append(l)
    return out

def lines_of(s):
    return [l.strip() for l in s.strip('\n').split('\n') if l.strip()]

def interleave(main, fill, per=2, skip=0):
    out = []; fi = 0; nm = 0
    def take():
        nonlocal fi
        k = 0
        while fi < len(fill) and k < per:
            out.append(fill[fi])
            if not fill[fi].startswith(';@'): k += 1
            fi += 1
    for l in main:
        out.append(l)
        if l.startswith('v_mfma'):
            nm += 1
            if nm > skip: take()
    out += fill[fi:]
    return out

def spread(main, fill, every=None):
    real = [i for i, l in enumerate(main) if not l.startswith(';@')]
    n, k = len(real), len(fill)
    if k == 0: return list(main)
    pos = {}
    for j in range(k):
        at = real[min(n - 1, (j * n) // k)]
        pos.setdefault(at, []).append(fill[j])
    out = []
    for i, l in enumerate(main):
        out.append(l)
        for f in pos.get(i, []): out += f
    return out

def unpk(line):
    t = line.strip()
    m = re.match(r'v_pk_(mul|add|fma)_f32\s+(.*)', t)
    if not m: return [line]
    op = m.group(1)
    body = m.group(2)
    mods = dict((k, [int(x) for x in v_.split(',')]) for k, v_ in re.findall(r'(op_sel|op_sel_hi|neg_lo|neg_hi):\[([\d,]+)\]', body))
    body = re.sub(r'\s*(op_sel|op_sel_hi|neg_lo|neg_hi):\[[\d,]+\]', '', body)
    ops = split_ops(body)
    base = [int(re.match(r'v\[(\d+):', o).group(1)) for o in ops]
    n = len(ops) - 1
    sel = mods.get('op_sel', [0] * n); selh = mods.get('op_sel_hi', [1] * n)
    nl = mods.get('neg_lo', [0] * n); nh = mods.get('neg_hi', [0] * n)
    lo = [('-' if nl[i] else '') + f"v{base[i+1] + sel[i]}" for i in range(n)]
    hi = [('-' if nh[i] else '') + f"v{base[i+1] + selh[i]}" for i in range(n)]
    d = base[0]
    if any(x.lstrip('-') == f"v{d}" for x in hi):
        return [line]
    def one(dst, src):
        if op == 'fma' and src[2] == f"v{dst}" and not any(x.startswith('-') for x in src):
            return f"v_fmac_f32 v{dst}, {src[0]}, {src[1]}"
        return f"v_{op}_f32 v{dst}, " + ', '.join(src)
    return [one(d, lo), one(d + 1, hi)]

def schedule(lines, window=400, mem_gap=0):
    N = len(lines)
    items = []
    for l in lines:
        t = l.strip()
        if t.startswith(';@'):
            regs = []
            if 'regs=' in t:
                for part in t.split('regs=')[1].split(','):
                    m = re.match(r'([vas])(\d+)(?:-[vas]?(\d+))?', part.strip())
                    lo = int(m.group(2)); hi = int(m.group(3) or lo)
                    regs += [(m.group(1), i) for i in range(lo, hi + 1)]
                t = t.split('regs=')[0].strip()
            items.append(dict(text=t, kind='wait', r=[], w=regs, mem=True))
        else:
            ins = Ins(t.split(';@tag')[0])
            r, w = list(ins.r), list(ins.w)
            if ins.kind == 'salu':
                w = w + [('scc', 0)]
                if 'cselect' in ins.op or 'addc' in ins.op: r = r + [('scc', 0)]
            mem = ins.kind in ('vmem', 'ds')
            items.append(dict(text=t, kind=ins.kind, r=r, w=w, mem=mem, ins=ins))
    preds = [[] for _ in range(N)]
    lastw, readers, lastmem = {}, {}, None
    for i, it in enumerate(items):
        for x in it['r']:
            if x in lastw:
                p = lastw[x]; lat = 0
                if items[p]['kind'] == 'mfma':
                    same = it['kind'] == 'mfma' and items[p]['ins'].D == it['ins'].C and x in it['ins'].C and x not in it['ins'].A + it['ins'].B
                    lat = 0 if same else 40
                elif items[p]['kind'] == 'valu' and it['kind'] == 'mfma': lat = 12
                elif items[p]['kind'] == 'valu' and getattr(it.get('ins'), 'dpp', False): lat = 12
                elif items[p]['kind'] == 'valu' and x[0] in ('vcc', 's'): lat = 12
                preds[i].append((p, lat))
        for x in it['w']:
            if x in lastw:
                p = lastw[x]
                preds[i].append((p, 40 if items[p]['kind'] == 'mfma' and it['kind'] != 'mfma' else 0))
            for p in readers.get(x, []):
                if p != i: preds[i].append((p, 16 if items[p]['kind'] == 'mfma' and x in items[p]['ins'].C else 0))
        if it['mem']:
            if lastmem is not None: preds[i].append((lastmem, mem_gap if it['kind'] == 'vmem' else 0))
            lastmem = i
        for x in it['r']: readers.setdefault(x, []).append(i)
        for x in it['w']:
            lastw[x] = i; readers[x] = []
    done = [None] * N
    out, now, pipe = [], 0, 0
    remaining = list(range(N))
    while remaining:
        best = None
        cands = []
        for i in remaining[:window]:
            if all(done[p] is not None for p, _ in preds[i]):
                rt = max([done[p] + lat for p, lat in preds[i]] + [0])
                if items[i]['kind'] == 'mfma': rt = max(rt, pipe)
                cands.append((i, rt))
        ready = [c for c in cands if c[1] <= now]
        if ready:
            mf = [c for c in ready if items[c[0]]['kind'] == 'mfma']
            best = (mf or ready)[0]
        else:
            best = min(cands, key=lambda c: (c[1], c[0]))
            now = best[1]
        i = best[0]
        done[i] = now
        k = items[i]['kind']
        if k == 'mfma':
            pipe = now + 16; now += 8
        elif k == 'wait': pass
        else: now += 4
        out.append(items[i]['text'])
        remaining.remove(i)
    return out

def atomize(lines):
    out = []
    for l in lines:
        l = l.strip()
        op = l.split()[0] if l else ''
        if out and op.startswith(('s_addc', 's_subb', 's_cselect', 's_cbranch')):
            out[-1] = out[-1] + '\n' + l
        else:
            out.append(l)
    return out

def weave(main, units):
    mf = [i for i, l in enumerate(main) if l.startswith('v_mfma')]
    n, k = len(mf), len(units)
    pos = {}
    for j in range(k):
        pos.setdefault(mf[min(n - 1, (j * n) // k)], []).append(units[j])
    out = []
    for i, l in enumerate(main):
        out.append(l)
        for u in pos.get(i, []): out += u
    return out
def units_of(lines):
    out, cur = [], []
    for l in lines:
        cur.append(l)
        if not l.startswith(';@'):
            out.append(cur); cur = []
    if cur: out.append(cur)
    return out
def mix(a_, b_):
    out, i, j = [], 0, 0
    while i < len(a_) or j < len(b_):
        if j >= len(b_) or (i < len(a_) and i * len(b_) <= j * len(a_)):
            out.append(a_[i]); i += 1
        else:
            out.append(b_[j]); j += 1
    return out
```

```python
from asmlib import *
from layout import *

K1_FFT = 128
K1_MOD = 96
INL = int(os.environ.get('K1_INL', '0'))
K1_WPK = 0 if INL else 128
WPF = int(os.environ.get('K1_WPF', '1'))
K1_TP = 48 if WPF and not INL else 0
K1_PF = 8
K1_GRID = K1_FFT + K1_MOD + K1_WPK + K1_TP + K1_PF
K1_LDS = 4096 + 32 * 528

POSC = "" if os.environ.get('K3V', '7') != '4' else """
    v_and_b32 v20, 0x183, v17
    v_bfe_u32 v19, v17, 2, 1
    v_lshl_add_u32 v20, v19, 6, v20
    v_bfe_u32 v19, v17, 3, 4
    v_lshl_add_u32 v20, v19, 2, v20
    s_cmp_eq_u32 s23, 2
    s_cselect_b64 vcc, -1, 0
    v_cndmask_b32 v17, v17, v20, vcc
"""

XL3 = int(os.environ.get('K1_XL3', '4'))

XLD = f"""    s_load_dwordx4 s[44:47], s[0:1], {KA_WR}
    s_load_dwordx2 s[42:43], s[0:1], {KA_WDN}""" if INL else ""

def gen_k1(A, name, pf_start_label, pf_bytes):
    kernel_header(A, name)
    A(f"""
    s_getpc_b64 s[40:41]
    v_lshlrev_b32 v1, 5, v0
    global_load_dword v200, v1, s[40:41]
    s_cmp_ge_u32 s2, {K1_FFT}
    s_cbranch_scc1 L_k1_side
    s_load_dwordx2 s[4:5], s[0:1], {KA_X}
    s_load_dwordx2 s[6:7], s[0:1], {KA_WS}
{XLD}
    """)
    stamp(A, 'k1', 0)
    A("""
    s_and_b32 s20, s2, 31
    s_lshr_b32 s21, s2, 5
    v_and_b32 v1, 15, v0            ; m / n
    v_bfe_u32 v2, v0, 4, 2          ; g
    v_lshrrev_b32 v3, 6, v0         ; w
    v_lshlrev_b32 v4, 18, v2
    v_lshl_add_u32 v4, v3, 8, v4
    v_lshl_add_u32 v4, v1, 4, v4    ; g*256K + w*256 + m*16
    s_lshl_b32 s22, s20, 10
    s_waitcnt lgkmcnt(0)
    """)
    stamp(A, 'k1', 1)
    srd(A, 8, 4, 2097152)
    L = lambda kk, i: 16 + (kk * 8 + i) * 4
    def xload(q):
        A(f"""
        s_add_u32 s28, s21, {q}
        s_and_b32 s{30+q}, s28, 3
        s_lshr_b32 s29, s{30+q}, 1
        s_lshl_b32 s29, s29, 20
        s_and_b32 s28, s28, 1
        s_lshl_b32 s28, s28, 17
        s_add_u32 s28, s28, s29
        s_add_u32 s28, s28, s22
        """)
        for i in range(4):
            if i: A(f"s_add_u32 s28, s28, 32768")
            A(f"buffer_load_dwordx4 {v(16 + (q*4+i)*4, 4)}, v4, s[8:11], s28 offen")
    xload(0); xload(1)
    srd(A, 12, 6, SZ_ABUF, WS_ABUF)
    stamp(A, 'k1', 2)
    FC = lambda nt, c, kk: 128 + ((nt * 2 + c) * 2 + kk) * 4
    CS, SN = 160, 168
    A(f"""
    v_cvt_f32_u32 v5, v1
    v_mul_f32 v5, {fl(1/64)}, v5            ; n/64
    v_lshlrev_b32 v6, 3, v2
    v_cvt_f32_u32 v6, v6                     ; 8g
    v_mul_f32 v6, v5, v6                     ; n*8g/64
    """)
    for i in range(8):
        if i % 4 == 0:
            q = i // 4
            A(f"""
            s_lshr_b32 s28, s{30+q}, 1
            s_lshl_b32 s28, s28, 5
            s_and_b32 s29, s{30+q}, 1
            s_lshl_b32 s29, s29, 2
            s_add_u32 s28, s28, s29
            v_cvt_f32_u32 v7, s28
            v_fma_f32 v7, v7, v5, v6
            """)
        else:
            A(f"v_add_f32 v7, v7, v5")
        A(f"v_cos_f32 v{CS+i}, v7")
        A(f"v_sin_f32 v{SN+i}, v7")
    def term(kind, i):
        c_, s_ = f"v{CS+i}", f"v{SN+i}"
        return {'c': c_, '-c': '-' + c_, 's': s_, '-s': '-' + s_}[kind]
    tab = {(0, 0): ['c'] * 4, (0, 1): ['-s'] * 4,
           (1, 0): ['c', '-s', '-c', 's'], (1, 1): ['-s', '-c', 's', 'c']}
    for nt in range(2):
        for c in range(2):
            for d in range(4):
                i0, i1 = 2 * d, 2 * d + 1
                A(f"v_cvt_pk_bf16_f32 v{FC(nt,c,0)+d}, {term(tab[(nt,c)][i0%4], i0)}, {term(tab[(nt,c)][i1%4], i1)}")
    A("""
    v_cmp_eq_u32 vcc, 0, v1
    v_mov_b32 v8, 0xbf803f80
    v_and_b32 v9, 1, v1
    v_sub_u32 v9, 0, v9
    v_and_b32 v9, 0x80008000, v9
    """)
    for d in range(4):
        A(f"v_cndmask_b32 v{FC(0,1,0)+d}, v{FC(0,1,0)+d}, v8, vcc")
    for nt in range(2):
        for c in range(2):
            for d in range(4):
                A(f"v_xor_b32 v{FC(nt,c,1)+d}, v9, v{FC(nt,c,0)+d}")
    S0, Q0 = 80, 96
    for k in range(16):
        A(f"v_mov_b64 v[{S0+2*k}:{S0+2*k+1}], 0")
    A("s_mov_b32 s24, 0x3f803f80")
    A("s_mov_b32 s25, 0xffff0000")
    A("""
    v_bfe_u32 v10, v0, 3, 1                 ; b3 = stat
    v_bfe_u32 v11, v0, 2, 1                 ; b2 = kk
    v_lshlrev_b32 v10, 8, v10
    v_lshl_add_u32 v10, v3, 9, v10          ; w*512 + st*256
    v_lshl_add_u32 v10, v11, 7, v10         ; + kk*128
    v_lshl_add_u32 v10, v2, 5, v10
    v_and_b32 v11, 63, v0
    v_lshlrev_b32 v11, 2, v11
    v_lshl_add_u32 v12, v3, 9, v11          ; w*512 + lane*4 (+2048): rs write addr
    v_lshlrev_b32 v13, 9, v3
    v_lshl_add_u32 v13, v2, 5, v13          ; w*512 + g*32 (+2048): rs read addr
    ; staging: row stride 528 B (512 + 16 pad): write n*528 + (4w+g)*16
    v_mul_u32_u24 v14, 528, v1
    v_lshl_add_u32 v15, v3, 2, v2
    v_lshl_add_u32 v14, v15, 4, v14
    v_bfe_u32 v112, v0, 5, 1
    v_lshl_add_u32 v112, v3, 3, v112        ; row (k = 0)
    v_and_b32 v113, 31, v0
    v_mul_u32_u24 v15, 528, v112
    v_lshl_add_u32 v15, v113, 4, v15
    v_lshlrev_b32 v112, 16, v112
    v_lshl_add_u32 v112, v113, 4, v112
    s_lshl_b32 s26, s20, 11
    s_lshl_b32 s27, s21, 9
    s_add_u32 s26, s26, s27                 ; s2*2048 + p*512
    s_add_u32 s27, s26, 0x100000
    """)
    stamp(A, 'k1', 3)
    r1a = lambda k: f"v_add_f32_dpp v{S0+k}, v{S0+k}, v{S0+k} row_ror:8 row_mask:0xf bank_mask:0x3"
    r1b = lambda k: f"v_add_f32_dpp v{S0+k}, v{Q0+k}, v{Q0+k} row_ror:8 row_mask:0xf bank_mask:0xc"
    r2a = lambda k: f"v_add_f32_dpp v{S0+k}, v{S0+k}, v{S0+k} row_shl:4 row_mask:0xf bank_mask:0x5"
    r2b = lambda k: f"v_add_f32_dpp v{S0+k}, v{S0+8+k}, v{S0+8+k} row_shr:4 row_mask:0xf bank_mask:0xa"
    r3 = lambda k: f"v_add_f32_dpp v{S0+k}, v{S0+k}, v{S0+k} quad_perm:[1,0,3,2] row_mask:0xf bank_mask:0xf"
    r4 = lambda k: f"v_add_f32_dpp v{S0+k}, v{S0+k}, v{S0+k} quad_perm:[2,3,0,1] row_mask:0xf bank_mask:0xf"
    def lagged(k):
        o = []
        if 0 <= k - 1 < 16: o.append(r1a(k - 1))
        if 0 <= k - 2 < 16: o.append(r1b(k - 2))
        if 0 <= k - 3 < 8: o.append(r2a(k - 3))
        if 0 <= k - 11 < 8: o.append(r2b(k - 11))
        if 0 <= k - 12 < 8: o.append(r3(k - 12))
        if 0 <= k - 13 < 8: o.append(r4(k - 13))
        return o
    for k in range(21):
        if k < 16:
            if k == 0: xload(2)
            if k == XL3: xload(3)
            if k == 1: stamp(A, 'k1', 4)
            for j_ in range(4):
                A(f"v_dot2c_f32_bf16 v{S0+k}, s24, v{16+4*k+j_}")
                A(f"v_dot2c_f32_bf16 v{Q0+k}, v{16+4*k+j_}, v{16+4*k+j_}")
        A.ext(lagged(k))
        if INL and k == int(os.environ.get('K1_INLK', '12')):
            A(f"""
            s_sub_u32 s48, 0, s20
            s_bitcmp1_b32 s21, 0
            s_cselect_b32 s48, s48, s20
            s_add_u32 s49, s21, 1
            s_lshr_b32 s49, s49, 1
            s_lshl_b32 s49, s49, 6
            s_add_u32 s48, s48, s49
            s_cmp_eq_u32 s2, 64
            s_cselect_b32 s48, 32, s48
            s_cmp_eq_u32 s2, 96
            s_cselect_b32 s48, 96, s48
            s_mul_i32 s48, s48, 514
            v_lshrrev_b32 v114, 4, v0
            v_mul_u32_u24 v114, {128*514}, v114
            v_min_u32 v115, 8, v1
            v_lshl_add_u32 v114, v115, 6, v114
            v_lshlrev_b32 v115, 7, v0
            s_lshl_b32 s49, s2, 15
            """)
            srd(A, 52, 44, 2048 * 514)
            A("buffer_load_ushort v116, v114, s[52:55], s48 offen")
            srd(A, 52, 46, 2048 * 514)
            A("buffer_load_ushort v117, v114, s[52:55], s48 offen")
            srd(A, 52, 42, 1376 * 1024)
            A("buffer_load_dword v118, v115, s[52:55], s49 offen")
    stamp(A, 'k1', 5)
    A(f"ds_write_b128 v10, v[{S0}:{S0+3}]")
    A(f"ds_write_b128 v10, v[{S0+4}:{S0+7}] offset:16")
    A("""
    s_waitcnt lgkmcnt(0)
    s_barrier
    ds_read2st64_b32 v[96:97], v11 offset0:0 offset1:1
    ds_read2st64_b32 v[98:99], v11 offset0:2 offset1:3
    ds_read2st64_b32 v[100:101], v11 offset0:4 offset1:5
    ds_read2st64_b32 v[102:103], v11 offset0:6 offset1:7
    """)
    T = lambda e, k: 176 + e * 16 + k
    for p in range(4):
        if p < 3:
            A(f"s_cmp_lg_u32 s21, {p}")
            A(f"s_cbranch_scc1 L_k1_p{p+1}")
        for k in range(16):
            A(f"v_lshlrev_b32 v{T(0,k)}, 16, v{16+4*k+p}")
            A(f"v_and_b32 v{T(1,k)}, s25, v{16+4*k+p}")
        if p < 3:
            A("s_branch L_k1_pdone")
            A(f"L_k1_p{p+1}:")
    A("L_k1_pdone:")
    stamp(A, 'k1', 6)
    A("""
    s_waitcnt lgkmcnt(0)
    v_pk_add_f32 v[96:97], v[96:97], v[98:99]
    v_pk_add_f32 v[100:101], v[100:101], v[102:103]
    v_pk_add_f32 v[96:97], v[96:97], v[100:101]
    """)
    A(f"""
    v_mul_f32 v96, {fl(1/512)}, v96          ; mean
    v_mul_f32 v97, {fl(1/512)}, v97          ; E[x^2]
    v_fma_f32 v97, -v96, v96, v97
    v_max_f32 v97, 0, v97
    v_add_f32 v97, {fl(1e-5)}, v97
    v_rsq_f32 v97, v97
    v_mul_f32 v96, -1.0, v96
    v_mul_f32 v96, v96, v97                  ; -mean*rstd
    ds_write2st64_b32 v12, v97, v96 offset0:8 offset1:9
    s_waitcnt lgkmcnt(0)
    """)
    for kk in range(2):
        for h in range(2):
            A(f"ds_read_b128 v[{80+kk*8+h*4}:{80+kk*8+h*4+3}], v13 offset:{2048 + kk*128 + h*16}")
            A(f"ds_read_b128 v[{96+kk*8+h*4}:{96+kk*8+h*4+3}], v13 offset:{2048 + 256 + kk*128 + h*16}")
    stamp(A, 'k1', 7)
    DF = lambda e, kk: 16 + (e * 2 + kk) * 4
    ACC = lambda e, nt, c: 32 + ((e * 2 + nt) * 2 + c) * 4
    for kk in range(2):
        A(f"s_waitcnt lgkmcnt({4 if kk == 0 else 0})")
        for e in range(2):
            for d in range(4):
                k = kk * 8 + 2 * d
                A(f"v_pk_fma_f32 v[{T(e,k)}:{T(e,k)+1}], v[{T(e,k)}:{T(e,k)+1}], v[{80+k}:{81+k}], v[{96+k}:{97+k}]")
    P = []
    for e in range(2):
        for kk in range(2):
            for d in range(4):
                k = kk * 8 + 2 * d
                P.append(f"v_cvt_pk_bf16_f32 v{DF(e,kk)+d}, v{T(e,k)}, v{T(e,k)+1}")
        for nt in range(2):
            for kk in range(2):
                for c in range(2):
                    cin = "0" if kk == 0 else v(ACC(e, nt, c), 4)
                    P.append(f"v_mfma_f32_16x16x32_bf16 {v(ACC(e,nt,c),4)}, {v(DF(e,kk),4)}, {v(FC(nt,c,kk),4)}, {cin}")
    for e in range(2):
        for nt in range(2):
            o = 64 + (e * 2 + nt) * 4
            for r in range(4):
                P.append(f"v_cvt_pk_bf16_f32 v{o+r}, v{ACC(e,nt,0)+r}, v{ACC(e,nt,1)+r}")
            P.append(f"ds_write_b128 v14, {v(o,4)} offset:{4096 + nt*16*528 + e*256}")
    A.ext(schedule(P))
    A("s_waitcnt lgkmcnt(0)")
    A("s_barrier")
    for k in range(4):
        A(f"ds_read_b128 {v(64+4*k,4)}, v15 offset:{4096 + k*2*528}")
    for k in range(4):
        A(f"s_waitcnt lgkmcnt({3-k})")
        A(f"buffer_store_dwordx4 {v(64+4*k,4)}, v112, s[12:15], s26 offen")
        if k < 3: A("s_add_u32 s26, s26, 0x20000")
    stamp(A, 'k1', 8)
    dump_stamps(A, 'k1', 9, 6, 4, vt=2)
    A("s_endpgm")

    A("L_k1_side:")
    A(f"""
    s_cmp_ge_u32 s2, {K1_FFT + K1_MOD}
    s_cbranch_scc1 L_k1_pf
    s_load_dwordx4 s[4:7], s[0:1], {KA_C}     ; c, w_mod
    s_load_dwordx2 s[16:17], s[0:1], {KA_WS}
    s_sub_u32 s20, s2, {K1_FFT}
    s_and_b32 s21, s20, 7
    s_lshr_b32 s22, s20, 4
    s_lshl_b32 s22, s22, 3
    s_add_u32 s21, s21, s22
    s_lshl_b32 s21, s21, 1
    s_bfe_u32 s22, s20, 0x10003
    s_add_u32 s21, s21, s22                   ; cg 0..95
    v_and_b32 v1, 3, v0                       ; cq
    v_lshrrev_b32 v2, 2, v0                   ; rg 0..63
    v_mul_u32_u24 v3, 6144, v2
    v_lshl_add_u32 v3, v1, 4, v3
    v_lshlrev_b32 v4, 1, v2
    s_lshl_b32 s22, s21, 6
    s_waitcnt lgkmcnt(0)
    """)
    srd(A, 8, 6, 512 * 6144)
    srd(A, 12, 4, 1024)
    for j in range(8):
        A(f"buffer_load_ushort v{8+j}, v4, s[12:15], 0 offen offset:{j*128}")
    for j in range(8):
        A(f"s_add_u32 s23, s22, {j * 64 * 6144}")
        A(f"buffer_load_dwordx4 {v(16+4*j,4)}, v3, s[8:11], s23 offen")
    srd(A, 12, 16, SZ_MOD, WS_MOD)
    A("s_mov_b32 s25, 0xffff0000")
    A("s_waitcnt vmcnt(8)")
    for j in range(8):
        A(f"v_lshlrev_b32 v{8+j}, 16, v{8+j}")
        A(f"v_mul_f32 v{48+j}, {fl(-1.4426950408889634)}, v{8+j}")
        A(f"v_exp_f32 v{48+j}, v{48+j}")
    for j in range(8):
        A(f"v_add_f32 v{48+j}, 1.0, v{48+j}")
        A(f"v_rcp_f32 v{48+j}, v{48+j}")
    for j in range(8):
        A(f"v_mul_f32 v{8+j}, v{8+j}, v{48+j}")
        A(f"v_cvt_pk_bf16_f32 v{8+j}, v{8+j}, v{8+j}")
        A(f"v_and_b32 v{8+j}, s25, v{8+j}")
    for j in range(8):
        A(f"s_waitcnt vmcnt({7-j})")
        for q in range(4):
            A(f"v_lshlrev_b32 v56, 16, v{16+4*j+q}")
            A(f"v_and_b32 v57, s25, v{16+4*j+q}")
            if j == 0:
                A(f"v_mul_f32 v{48+2*q}, v56, v{8+j}")
                A(f"v_mul_f32 v{49+2*q}, v57, v{8+j}")
            else:
                A(f"v_fmac_f32 v{48+2*q}, v56, v{8+j}")
                A(f"v_fmac_f32 v{49+2*q}, v57, v{8+j}")
    for rot in (4, 8):
        for q in range(8):
            A(f"v_add_f32_dpp v{48+q}, v{48+q}, v{48+q} row_ror:{rot} row_mask:0xf bank_mask:0xf")
    A("""
    v_lshrrev_b32 v5, 4, v0
    v_lshlrev_b32 v5, 7, v5
    v_lshl_add_u32 v5, v1, 5, v5              ; row*128 + cq*32
    ds_write_b128 v5, v[48:51]
    ds_write_b128 v5, v[52:55] offset:16
    v_lshlrev_b32 v6, 2, v0
    s_waitcnt lgkmcnt(0)
    s_barrier
    v_cmp_gt_u32 vcc, 32, v0
    s_and_saveexec_b64 s[26:27], vcc
    s_cbranch_execz L_k1_end
    """)
    for k in range(8):
        A(f"ds_read2_b32 v[{16+2*k}:{17+2*k}], v6 offset0:{64*k} offset1:{64*k+32}") if 64*k+32 < 256 else \
            A(f"ds_read2_b32 v[{16+2*k}:{17+2*k}], v7 offset0:{64*(k-4)} offset1:{64*(k-4)+32}")
        if k == 0:
            A("v_add_u32 v7, 1024, v6")
    A("s_waitcnt lgkmcnt(0)")
    for k in (4, 2, 1):
        for q in range(k):
            A(f"v_pk_add_f32 v[{16+2*q}:{17+2*q}], v[{16+2*q}:{17+2*q}], v[{16+2*(q+k)}:{17+2*(q+k)}]")
    A(f"""
    v_add_f32 v16, v16, v17
    v_cvt_pk_bf16_f32 v16, v16, v16
    v_and_b32 v16, s25, v16
    s_lshr_b32 s23, s21, 4
    s_cmp_eq_u32 s23, 1
    s_cselect_b32 s24, 1.0, 0
    s_cmp_eq_u32 s23, 4
    s_cselect_b32 s24, 1.0, s24
    v_add_f32 v16, s24, v16
    v_cvt_pk_bf16_f32 v16, v16, v16
    v_and_b32 v16, s25, v16
    s_and_b32 s22, s21, 15
    s_lshl_b32 s22, s22, 5
    v_add_u32 v17, s22, v0                    ; d
    v_and_b32 v18, 7, v17
    v_lshlrev_b32 v18, 6, v18
    v_lshrrev_b32 v19, 7, v17
    v_lshl_add_u32 v18, v19, 4, v18
    v_bfe_u32 v19, v17, 3, 2
    v_lshl_add_u32 v18, v19, 2, v18
    v_bfe_u32 v20, v17, 5, 2
    v_add_u32 v18, v18, v20                   ; posA
    s_cmp_lt_u32 s23, 2
    s_cselect_b64 vcc, -1, 0
    v_cndmask_b32 v17, v17, v18, vcc
    {POSC}
    v_lshlrev_b32 v17, 2, v17
    s_lshl_b32 s22, s23, 11                   ; chunk*2048
    buffer_store_dword v16, v17, s[12:15], s22 offen
    s_endpgm
    """)
    A("L_k1_wpk:")
    A(f"""
    s_cmp_ge_u32 s2, {K1_GRID - K1_TP}
    s_cbranch_scc1 L_k1_fill
    s_load_dwordx4 s[4:7], s[0:1], {KA_WR}    ; w_r, w_i
    s_sub_u32 s20, s2, {K1_FFT + K1_MOD + K1_PF}
    s_and_b32 s21, s20, 31                    ; p
    s_lshr_b32 s22, s20, 5                    ; cls
    s_sub_u32 s23, 0, s21
    s_bitcmp1_b32 s22, 0
    s_cselect_b32 s23, s23, s21               ; +-p
    s_add_u32 s24, s22, 1
    s_lshr_b32 s24, s24, 1
    s_lshl_b32 s24, s24, 6
    s_add_u32 s23, s23, s24                   ; residue
    ; p == 0: classes 2,3 would repeat 64 / 128 -> use 32 and 96 (unit 32 lives on XCD 0)
    s_cmp_eq_u32 s20, 64
    s_cselect_b32 s23, 32, s23
    s_cmp_eq_u32 s20, 96
    s_cselect_b32 s23, 96, s23
    s_mul_i32 s23, s23, 514
    v_lshrrev_b32 v1, 4, v0                   ; j = 0..15
    v_and_b32 v2, 15, v0
    v_mul_u32_u24 v1, {128*514}, v1
    v_min_u32 v2, 8, v2
    v_lshl_add_u32 v1, v2, 6, v1
    s_waitcnt lgkmcnt(0)
    """)
    WSZ = 2048 * 514
    srd(A, 8, 4, WSZ)
    srd(A, 12, 6, WSZ)
    A("""
    buffer_load_ushort v4, v1, s[8:11], s23 offen
    buffer_load_ushort v5, v1, s[12:15], s23 offen
    s_waitcnt vmcnt(0)
    s_endpgm
    """)
    A("L_k1_fill:")
    A(f"""
    s_cmp_ge_u32 s2, {K1_GRID}
    s_cbranch_scc1 L_k1_end
    s_load_dwordx4 s[4:7], s[0:1], {KA_WG}
    s_load_dwordx2 s[16:17], s[0:1], {KA_WDN}
    s_sub_u32 s21, s2, {K1_GRID - K1_TP}
    s_lshl_b32 s21, s21, 15
    v_lshlrev_b32 v1, 7, v0
    s_waitcnt lgkmcnt(0)
    """)
    if WPF & 1:
        srd(A, 8, 16, 1376 * 1024)
        A("buffer_load_dword v4, v1, s[8:11], s21 offen")
    if WPF & 2:
        srd(A, 8, 4, 1376 * 1024)
        srd(A, 12, 6, 1376 * 1024)
        A("buffer_load_dword v5, v1, s[8:11], s21 offen")
        A("buffer_load_dword v6, v1, s[12:15], s21 offen")
    A("s_waitcnt vmcnt(0)")
    A("s_endpgm")
    A("L_k1_pf:")
    A(f"""
    s_cmp_ge_u32 s2, {K1_FFT + K1_MOD + K1_PF}
    s_cbranch_scc1 L_k1_wpk
    s_getpc_b64 s[4:5]
    L_k1_pc:
    s_add_u32 s4, s4, {pf_start_label}-L_k1_pc
    s_addc_u32 s5, s5, 0
    v_lshlrev_b32 v1, 4, v0
    """)
    n = (pf_bytes + 4095) // 4096
    for i in range(n):
        A(f"global_load_dwordx4 v[4:7], v1, s[4:5]")
        if i + 1 < n:
            A("v_add_u32 v1, 0x1000, v1")
    if int(os.environ.get('K1_TLB', '0')):
        A(f"""
        s_load_dwordx4 s[4:7], s[0:1], {KA_WG}
        s_load_dwordx2 s[16:17], s[0:1], {KA_WDN}
        s_load_dwordx2 s[18:19], s[0:1], {KA_OUT}
        s_load_dwordx2 s[20:21], s[0:1], {KA_WS}
        v_lshlrev_b32 v1, 16, v0
        s_waitcnt lgkmcnt(0)
        """)
        for base, size in ((4, 1376 * 1024), (6, 1376 * 1024), (16, 1376 * 1024), (18, 2097152), (20, WS_END)):
            srd(A, 8, base, size)
            A("buffer_load_dword v4, v1, s[8:11], 0 offen")
        A("s_mov_b32 s22, 0x1000000")
        A("buffer_load_dword v4, v1, s[8:11], s22 offen")
    A("s_waitcnt vmcnt(0)")
    A("L_k1_end:")
    A("s_endpgm")
    return descriptor(name, 208, 100, 208)
```

```python
import sys, os
from asmlib import *
from layout import *
import k1
HDR = open('adaLN_cond__spectral_gfnet__glu_gated_bilinear__prompt.s.ref').read().split('; Override launch')[0]

def build(which=('k1',)):
    A = Asm()
    launches = []
    descs = []
    A('.amdgcn_target "amdgcn-amd-amdhsa--gfx950"')
    A('.text')
    for l in '''Generated by the author's own Python generator (hand-scheduled gfx950 assembly).
k1 : LayerNorm-1 + first radix-64 stage of the S-direction DFT (MFMA), adaLN modulation vector, L2 prefetch roles.
k2 : 129 spectral units (radix-32 S stage, modulation, 16x32 D-FFT, filter, inverse D-FFT, radix-8 inverse S stage),
     plus re-packing of the MLP weights into MFMA fragment order and the inverse-DFT table.
k34: clusters of 8 workgroups per 64-row block: cooperative radix-256 inverse S stage + residual, GLU GEMM with the
     LayerNorm-2 folded into its epilogue, down GEMM + residual; hand-offs through write-through stores and flags.'''.split('\n'):
        A.comment(l)
    later = [k for k in which if k != 'k1']
    import importlib
    mods = {k: importlib.import_module(k + ('_v4' if k == 'k3' and os.environ.get('K3V') == '4' else '')) for k in which}
    descs.append(k1.gen_k1(A, 'k1_kernel', 'L_code_k2', PF_BYTES))
    launches.append(f"; @launch kernel=k1_kernel grid=({k1.K1_GRID},1,1) block=(256,1,1) lds={k1.K1_LDS}")
    A('.p2align 8')
    A('L_code_k2:')
    for k in later:
        m = mods[k]
        descs.append(m.gen(A, k + '_kernel'))
        launches.append(f"; @launch kernel={k}_kernel grid=({m.GRID},1,1) block=({m.BLOCK},1,1) lds={m.LDS}")
    if os.environ.get('SC1', '1') == '1':
        cur = None; new = []
        for l in A.lines:
            t = l.strip()
            if t.endswith('_kernel:'): cur = t
            if (cur != 'k4_kernel:' or os.environ.get('SC1K4', '1') == '1') and t.startswith('buffer_store') and 's[56:59]' not in t:
                l = (l.split(';@tag')[0].rstrip() + ' sc1' + (' ;@tag' + l.split(';@tag')[1] if ';@tag' in l else ''))
            new.append(l)
        A.lines = new
    if DIAG == 'rt':
        new = []; kidx = -1
        for l in A.lines:
            t = l.strip()
            if t.endswith('_kernel:'):
                kidx += 1
                new.append(l)
                new.append('    s_memrealtime s[96:97]')
                new.append('    s_memtime s[92:93]')
                continue
            if t == 's_endpgm':
                new += ['    ' + x for x in lines_of(f'''
                s_mov_b64 exec, -1
                s_waitcnt vmcnt(0) lgkmcnt(0)
                s_memrealtime s[98:99]
                s_memtime s[94:95]
                s_load_dwordx2 s[90:91], s[0:1], {KA_WS}
                s_waitcnt lgkmcnt(0)
                s_add_u32 s84, s90, {WS_DIAG + kidx * 65536}
                s_addc_u32 s85, s91, 0
                s_mov_b32 s86, 65536
                s_mov_b32 s87, 0x00020000
                s_lshl_b32 s88, s2, 4
                v_mov_b32 v0, s96
                v_mov_b32 v1, s98
                v_mov_b32 v2, s92
                v_mov_b32 v3, s94
                v_mov_b32 v4, 0
                buffer_store_dwordx4 v[0:3], v4, s[84:87], s88 offen
                s_endpgm''')]
                continue
            new.append(l)
        A.lines = new
        descs = [d.replace('next_free_sgpr 40', 'next_free_sgpr 100') for d in descs]
    if DIAG == 'hd':
        new = []; kidx = -1
        for l in A.lines:
            t = l.strip()
            if t.endswith('_kernel:'):
                kidx += 1
                new.append(l)
                new.append('    s_memrealtime s[96:97]')
                continue
            if t == 's_endpgm':
                new += ['    ' + x for x in lines_of(f'''
                s_mov_b64 exec, 1
                s_waitcnt vmcnt(0) lgkmcnt(0)
                s_memrealtime s[98:99]
                s_load_dwordx2 s[90:91], s[0:1], {KA_DBG}
                s_waitcnt lgkmcnt(0)
                s_sub_u32 s84, s90, {kidx * 512}
                s_subb_u32 s85, s91, 0
                s_mov_b32 s86, 256
                s_mov_b32 s87, 0x00020000
                s_not_b32 s96, s96
                v_mov_b32 v0, s96
                v_mov_b32 v1, s98
                v_mov_b32 v4, 0
                buffer_atomic_umax v0, v4, s[84:87], 0 offen offset:{kidx * 8}
                buffer_atomic_umax v1, v4, s[84:87], 0 offen offset:{kidx * 8 + 4}
                s_endpgm''')]
                continue
            new.append(l)
        A.lines = new
    A('L_code_end:')
    A('s_endpgm')
    A('.fill 1024, 4, 0xbf800000')
    txt = HDR + '\n'.join(launches) + '\n' + A.text() + '.section .rodata,"a"\n' + ''.join('.p2align 6\n' + d for d in descs)
    return txt

PF_BYTES = 4096
if __name__ == '__main__':
    import subprocess, re
    which = sys.argv[2].split(',') if len(sys.argv) > 2 else ['k1']
    out = sys.argv[1]
    for it in range(2):
        txt = build(which)
        open('build_tmp.s', 'w').write(txt)
        r = subprocess.run(['clang', '-x', 'assembler', '-target', 'amdgcn-amd-amdhsa', '-mcpu=gfx950', '-c', 'build_tmp.s', '-o', 'build_tmp.o'], capture_output=True, text=True)
        if r.returncode:
            print(r.stderr[:3000]); sys.exit(1)
        sy = subprocess.run(['llvm-objdump', '-t', 'build_tmp.o'], capture_output=True, text=True).stdout
        d = {l.split()[-1]: int(l.split()[0], 16) for l in sy.splitlines() if ' .text' in l}
        PF_BYTES = max(d['L_code_end'] - d['L_code_k2'], 4)
    open(out, 'w').write(txt)
    names = sorted([(a_, n) for n, a_ in d.items() if n.endswith('_kernel') or n == 'L_code_end'])
    print("code sizes:", [(n, names[i+1][0] - a_) for i, (a_, n) in enumerate(names[:-1])], "file bytes", len(txt))
```
